```python
import torch

def _softmax(x, axis=-1):
    return torch.softmax(x, dim=axis)
def _gelu(x):
    return torch.nn.functional.gelu(x, approximate="tanh")
def _silu(x):
    return torch.nn.functional.silu(x)
def _sigmoid(x):
    return torch.sigmoid(x)
def _layernorm(x, axis=-1, eps=1e-5):
    m = x.mean(dim=axis, keepdim=True)
    v = x.var(dim=axis, keepdim=True, unbiased=False)
    return (x - m) / torch.sqrt(v + eps)
def _scatter_add(tgt, idx, src, axis=0):
    return tgt.clone().index_add_(axis, idx, src)
def _segment_sum(src, seg, n):
    out = torch.zeros((n,) + src.shape[1:], dtype=src.dtype)
    return out.index_add_(0, seg, src)
def _pad(x, pw):
    flat = tuple(v for pair in reversed(pw) for v in pair)
    return torch.nn.functional.pad(x, flat)

kernel_name = 'standalone__gqa_softmax__decode'

def setup_inputs():

    _w = (lambda a: (lambda t: t.to(torch.bfloat16) if t.is_floating_point() else t)(torch.as_tensor(a)))
    B, Hq, Hkv, Sq, Sk, D = 1, 32, 32, 1, 32768, 128
    return {
        "q": _w((lambda *s: torch.randn(*s, dtype=torch.bfloat16) * 0.8)(B, Hq, Sq, D)),
        "k": _w((lambda *s: torch.randn(*s, dtype=torch.bfloat16) * 0.8)(B, Hkv, Sk, D)),
        "v": _w((lambda *s: torch.randn(*s, dtype=torch.bfloat16) * 0.05)(B, Hkv, Sk, D)),
    }

def reference(q, k, v):
    B, Hq, Sq, D = q.shape
    Hkv = k.shape[1]
    rep = Hq // Hkv
    k = (lambda x, n, axis: torch.repeat_interleave(x, n, dim=axis))(k, rep, axis=1)
    v = (lambda x, n, axis: torch.repeat_interleave(x, n, dim=axis))(v, rep, axis=1)
    scale = D ** -0.5
    scores = torch.einsum("bhqd,bhkd->bhqk", q, k) * scale
    p = _softmax(scores, axis=-1)
    return torch.einsum("bhqk,bhkd->bhqd", p, v)
```

```python
import sys
import math

NAME = "standalone__gqa_softmax__decode"

HEADER = """; Kernarg layout for this problem (48 bytes, ptrs only, base s[0:1]):
"""


def lg(x):
    r = int(math.log2(x))
    assert 1 << r == x, x
    return r


def gen(nwg=256, wpw=4, depth=4, gran=1, kfl="nt", vfl="nt", headmajor=1, compute=1,
        stamp=0, twok=0, klin=0):
    S = nwg // 32
    W = S * wpw
    T = 2048 // W
    if gran == 0:
        gran = T
    G = gran
    D = depth
    assert T >= D
    L = []
    e = L.append

    vKoff, vVoff = 1, 2
    vT1, vT2, vT, vP, vPk, vL, vNeg, vC, vX = 3, 4, 5, 6, 7, 8, 9, 10, 11
    vM = 12
    vQ = 16
    vS = 32
    vBA = 36
    vBB = 40
    vAL = 44
    vAH = 48
    vRing = 52
    nvgpr = vRing + 32 * D
    if nvgpr < vRing + 4 * max(S, wpw) + 8:
        nvgpr = vRing + 4 * max(S, wpw) + 8
    assert nvgpr <= 256, nvgpr

    def K(s, c):
        b = vRing + 32 * s + 4 * c
        return f"v[{b}:{b+3}]"

    def V(s, c):
        b = vRing + 32 * s + 16 + 4 * c
        return f"v[{b}:{b+3}]"

    def r4(b):
        return f"v[{b}:{b+3}]"

    sK, sV, sQ, sWS, sOUT, sDBG = 16, 20, 24, 28, 32, 36
    sHead, sSplit, sWave, sOff, sJ, sThr, sBase, sTmp, sTmp2 = 40, 41, 42, 43, 44, 45, 46, 47, 48
    sR0 = 50
    sEx = 54
    sT0 = 56
    sT1 = 58

    lds_bytes = wpw * 1024

    if twok:
        e(HEADER.rstrip())
        e(f"; @launch kernel={NAME}_kernel grid=({nwg},1,1) block=({wpw*64},1,1) lds={lds_bytes}")
        e(f"; @launch kernel=combine_kernel grid=(32,1,1) block=(64,1,1) lds=0")
    else:
        e(HEADER.rstrip())
        e(f"; @launch grid=({nwg},1,1) block=({wpw*64},1,1) lds={lds_bytes}")
    e('.amdgcn_target "amdgcn-amd-amdhsa--gfx950"')
    e(".text")
    e(f".globl {NAME}_kernel")
    e(".p2align 8")
    e(f".type {NAME}_kernel,@function")
    e(f"{NAME}_kernel:")
    e(f"    s_cmp_ge_u32 s2, {nwg}")
    e(f"    s_cbranch_scc1 L_end")
    e("    s_load_dwordx8 s[4:11], s[0:1], 0")
    e("    s_load_dwordx4 s[12:15], s[0:1], 32")
    if stamp:
        e(f"    s_memrealtime s[{sT0}:{sT0+1}]")
    if headmajor:
        e(f"    s_lshr_b32 s{sHead}, s2, {lg(S)}")
        e(f"    s_and_b32 s{sSplit}, s2, {S-1}")
    else:
        e(f"    s_and_b32 s{sHead}, s2, 31")
        e(f"    s_lshr_b32 s{sSplit}, s2, 5")
    e(f"    v_lshrrev_b32 v{vX}, 6, v0")
    e(f"    v_and_b32 v0, 63, v0                ; lane")
    e(f"    v_readfirstlane_b32 s{sWave}, v{vX}")
    e(f"    v_lshlrev_b32 v{vVoff}, 4, v0")
    e(f"    v_and_b32 v{vT1}, 3, v0              ; b")
    e(f"    v_lshlrev_b32 v{vT1}, 4, v{vT1}       ; b*16")
    e(f"    v_lshrrev_b32 v{vT2}, 4, v0          ; g")
    e(f"    v_lshl_add_u32 v{vT1}, v{vT2}, 6, v{vT1}")
    e(f"    v_bfe_u32 v{vT2}, v0, 2, 2")
    if klin:
        e(f"    v_mov_b32 v{vKoff}, v{vVoff}")
    else:
        e(f"    v_lshl_add_u32 v{vKoff}, v{vT2}, 8, v{vT1}")
    e(f"    s_lshl_b32 s{sBase}, s{sSplit}, {lg(wpw)}")
    e(f"    s_add_u32 s{sBase}, s{sBase}, s{sWave}")
    e(f"    s_lshl_b32 s{sBase}, s{sBase}, {lg(G)+12}")
    e(f"    s_lshl_b32 s{sTmp}, s{sHead}, 23")
    e(f"    s_lshl_b32 s{sTmp2}, s{sHead}, 8      ; head*256")
    e(f"    s_mov_b32 s{sK+2}, 0x800000")
    e(f"    s_mov_b32 s{sK+3}, 0x00020000")
    e(f"    s_mov_b32 s{sV+2}, 0x800000")
    e(f"    s_mov_b32 s{sV+3}, 0x00020000")
    e(f"    s_mov_b32 s{sQ+2}, 0x2000")
    e(f"    s_mov_b32 s{sQ+3}, 0x00020000")
    e("    s_waitcnt lgkmcnt(0)")
    e(f"    s_mov_b32 s{sQ}, s4")
    e(f"    s_mov_b32 s{sQ+1}, s5")
    e(f"    s_add_u32 s{sK}, s6, s{sTmp}")
    e(f"    s_addc_u32 s{sK+1}, s7, 0")
    e(f"    s_add_u32 s{sV}, s8, s{sTmp}")
    e(f"    s_addc_u32 s{sV+1}, s9, 0")
    e(f"    buffer_load_dwordx4 {r4(vBA)}, v{vT1}, s[{sQ}:{sQ+3}], s{sTmp2} offen")

    def soff_const(j):
        return ((j // G) * W * G + (j % G)) * 4096

    def loadK(s, soff):
        for c in range(4):
            o = f" offset:{c*1024}" if c else ""
            e(f"    buffer_load_dwordx4 {K(s,c)}, v{vKoff}, s[{sK}:{sK+3}], {soff} offen{o} {kfl}".rstrip())

    def loadV(s, soff):
        for c in range(4):
            o = f" offset:{c*1024}" if c else ""
            e(f"    buffer_load_dwordx4 {V(s,c)}, v{vVoff}, s[{sV}:{sV+3}], {soff} offen{o} {vfl}".rstrip())

    for j in range(D):
        if j == 0:
            so = f"s{sBase}"
        else:
            e(f"    s_add_u32 s{sOff}, s{sBase}, {soff_const(j)}")
            so = f"s{sOff}"
        loadK(j, so)
        loadV(j, so)
    e(f"    s_mov_b32 s{sJ}, {D}")
    e(f"    s_mov_b32 s{sThr}, 0xff800000")
    e(f"    v_and_b32 v{vX}, 1, v0")
    e(f"    v_lshlrev_b32 v{vX}, 4, v{vX}")
    e(f"    v_mov_b32 v{vP}, 0xffff")
    e(f"    v_lshlrev_b32 v{vP}, v{vX}, v{vP}")
    e(f"    v_bfe_u32 v{vX}, v0, 1, 2            ; (lane&7)>>1")
    for r in range(4):
        e(f"    v_cmp_eq_u32 vcc, {r}, v{vX}")
        e(f"    s_nop 1")
        e(f"    v_cndmask_b32 v{vM+r}, 0, v{vP}, vcc")
    scale = (128 ** -0.5) * math.log2(math.e)
    import struct
    cbits = struct.unpack("<I", struct.pack("<f", scale))[0]
    e(f"    v_mov_b32 v{vC}, 0x{cbits:08x}       ; D^-0.5 * log2(e)")
    e(f"    v_mov_b32 v{vL}, 0")
    e(f"    v_mov_b32 v{vNeg}, 0")
    for r in range(4):
        e(f"    v_mov_b32 v{vAL+r}, 0")
        e(f"    v_mov_b32 v{vAH+r}, 0")
    e(f"    s_waitcnt vmcnt({min(63, 8*D)})")
    for c in range(4):
        e(f"    v_cmp_eq_u32 vcc, {c}, v{vT2}")
        e(f"    s_nop 1")
        for r in range(4):
            e(f"    v_cndmask_b32 v{vQ+4*c+r}, 0, v{vBA+r}, vcc")
    e("    s_nop 1")

    wn = 8 * D - 4
    assert wn <= 63
    e(".p2align 6")
    e("L_loop:")
    for s in range(D):
        e(f"    ; ---- slot {s}")
        e(f"    s_waitcnt vmcnt({wn})")
        if compute:
            e(f"    v_mfma_f32_16x16x32_bf16 {r4(vS)}, {K(s,0)}, {r4(vQ)}, 0")
            for c in range(1, 4):
                e(f"    v_mfma_f32_16x16x32_bf16 {r4(vS)}, {K(s,c)}, {r4(vQ+4*c)}, {r4(vS)}")
        if G == 1:
            e(f"    s_lshl_b32 s{sOff}, s{sJ}, {lg(W)+12}")
            e(f"    s_add_u32 s{sOff}, s{sOff}, s{sBase}")
            nsalu = 2
        else:
            e(f"    s_lshr_b32 s{sTmp}, s{sJ}, {lg(G)}")
            e(f"    s_lshl_b32 s{sTmp}, s{sTmp}, {lg(W)+lg(G)+12}")
            e(f"    s_and_b32 s{sOff}, s{sJ}, {G-1}")
            e(f"    s_lshl_b32 s{sOff}, s{sOff}, 12")
            e(f"    s_add_u32 s{sOff}, s{sOff}, s{sTmp}")
            e(f"    s_add_u32 s{sOff}, s{sOff}, s{sBase}")
            nsalu = 6
        e(f"    s_add_u32 s{sJ}, s{sJ}, 1")
        nsalu += 1
        loadK(s, f"s{sOff}")
        if compute:
            e(f"    v_mov_b32 v{vT1}, v{vNeg}")
            have = nsalu + 4 + 1
            pad = max(8 - have, 2)
            e(f"    s_nop {pad-1}")
            e(f"    v_fmac_f32_dpp v{vT1}, v{vS+0}, v{vC} quad_perm:[0,0,0,0] row_mask:0xf bank_mask:0xf")
            e(f"    v_mul_f32_dpp v{vT2}, v{vS+1}, v{vC} quad_perm:[1,1,1,1] row_mask:0xf bank_mask:0xf")
            e(f"    s_nop 0")
            e(f"    v_fmac_f32_dpp v{vT1}, v{vS+2}, v{vC} quad_perm:[2,2,2,2] row_mask:0xf bank_mask:0xf")
            e(f"    v_fmac_f32_dpp v{vT2}, v{vS+3}, v{vC} quad_perm:[3,3,3,3] row_mask:0xf bank_mask:0xf")
            e(f"    v_add_f32 v{vT}, v{vT1}, v{vT2}")
            e(f"    v_cmp_lt_f32 vcc, s{sThr}, v{vT}")
            e(f"    s_cbranch_vccnz L_rare{s}")
            e(f"L_back{s}:")
            e(f"    v_exp_f32 v{vP}, v{vT}")
            e(f"    s_nop 0")
            e(f"    v_cvt_pk_bf16_f32 v{vPk}, v{vP}, v{vP}")
            e(f"    v_add_f32 v{vL}, v{vL}, v{vP}")
            e(f"    v_and_b32 v{vBA+0}, v{vPk}, v{vM+0}")
            e(f"    v_and_b32 v{vBA+1}, v{vPk}, v{vM+1}")
            e(f"    v_and_b32 v{vBB+2}, v{vPk}, v{vM+2}")
            e(f"    v_and_b32 v{vBB+3}, v{vPk}, v{vM+3}")
            e(f"    v_and_b32_dpp v{vBA+2}, v{vPk}, v{vM+2} row_shr:4 row_mask:0xf bank_mask:0xf bound_ctrl:0")
            e(f"    v_and_b32_dpp v{vBA+3}, v{vPk}, v{vM+3} row_shr:4 row_mask:0xf bank_mask:0xf bound_ctrl:0")
            e(f"    v_and_b32_dpp v{vBB+0}, v{vPk}, v{vM+0} row_shl:4 row_mask:0xf bank_mask:0xf bound_ctrl:0")
            e(f"    v_and_b32_dpp v{vBB+1}, v{vPk}, v{vM+1} row_shl:4 row_mask:0xf bank_mask:0xf bound_ctrl:0")
        e(f"    s_waitcnt vmcnt({wn})")
        if compute:
            e(f"    v_mfma_f32_16x16x32_bf16 {r4(vAL)}, {V(s,0)}, {r4(vBA)}, {r4(vAL)}")
            e(f"    v_mfma_f32_16x16x32_bf16 {r4(vAH)}, {V(s,2)}, {r4(vBA)}, {r4(vAH)}")
            e(f"    v_mfma_f32_16x16x32_bf16 {r4(vAL)}, {V(s,1)}, {r4(vBB)}, {r4(vAL)}")
            e(f"    v_mfma_f32_16x16x32_bf16 {r4(vAH)}, {V(s,3)}, {r4(vBB)}, {r4(vAH)}")
        loadV(s, f"s{sOff}")
        if s == D - 1:
            e(f"    s_cmp_lt_u32 s{sJ}, {T+D}")
            e(f"    s_cbranch_scc1 L_loop")
        elif T % D != 0 and (s + 1) % D == T % D:
            e(f"    s_cmp_ge_u32 s{sJ}, {T+D}")
            e(f"    s_cbranch_scc1 L_done")
    e("L_done:")
    e("    s_nop 7")
    e("    s_nop 1")
    e(f"    v_add_f32_dpp v{vX}, v{vL}, v{vL} row_ror:4 row_mask:0xf bank_mask:0xf")
    for r in range(4):
        e(f"    v_add_f32_dpp v{vAL+r}, v{vAH+r}, v{vAL+r} row_shl:8 row_mask:0xf bank_mask:0xf bound_ctrl:0")
    e(f"    v_add_f32_dpp v{vX}, v{vX}, v{vX} row_ror:8 row_mask:0xf bank_mask:0xf")
    e("    s_nop 1")
    for r in range(4):
        e(f"    v_readlane_b32 s{sR0+r}, v{vX}, {16*r}")
    e("    s_nop 1")
    e(f"    v_mov_b32 v{vL}, s{sR0}")
    for r in range(1, 4):
        e(f"    v_add_f32 v{vL}, s{sR0+r}, v{vL}")
    e(f"    s_mov_b32 s{sWS}, s14")
    e(f"    s_mov_b32 s{sWS+1}, s15")
    e(f"    s_mov_b32 s{sWS+2}, {nwg*1024 + (nwg*wpw*16 if stamp else 0)}")
    e(f"    s_mov_b32 s{sWS+3}, 0x00020000")
    e(f"    s_mov_b32 s{sOUT}, s10")
    e(f"    s_mov_b32 s{sOUT+1}, s11")
    e(f"    s_mov_b32 s{sOUT+2}, 0x2000")
    e(f"    s_mov_b32 s{sOUT+3}, 0x00020000")
    e(f"    s_mov_b32 s{sDBG}, s12")
    e(f"    s_mov_b32 s{sDBG+1}, s13")
    e(f"    s_mov_b32 s{sDBG+2}, 256")
    e(f"    s_mov_b32 s{sDBG+3}, 0x00020000")
    if stamp:
        e(f"    s_memrealtime s[{sT1}:{sT1+1}]")
        e(f"    s_getreg_b32 s{sTmp2}, hwreg(HW_REG_XCC_ID)")
        e(f"    s_getreg_b32 s{sR0}, hwreg(HW_REG_HW_ID)")
        e(f"    s_lshl_b32 s{sTmp}, s2, {lg(wpw)}")
        e(f"    s_add_u32 s{sTmp}, s{sTmp}, s{sWave}")
        e(f"    s_lshl_b32 s{sTmp}, s{sTmp}, 4")
        e(f"    s_add_u32 s{sTmp}, s{sTmp}, {nwg*1024}")
        e("    s_waitcnt lgkmcnt(0)")
        e(f"    v_mov_b32 v{vBA}, s{sT0}")
        e(f"    v_mov_b32 v{vBA+1}, s{sT1}")
        e(f"    v_mov_b32 v{vBA+2}, s{sTmp2}")
        e(f"    v_mov_b32 v{vBA+3}, s{sR0}")
        e(f"    s_mov_b64 exec, 1")
        e(f"    buffer_store_dwordx4 {r4(vBA)}, off, s[{sWS}:{sWS+3}], s{sTmp}")
        e(f"    s_mov_b64 exec, -1")
    e(f"    v_lshrrev_b32 v{vT1}, 4, v0")
    e(f"    v_lshlrev_b32 v{vT1}, 7, v{vT1}       ; g*128 bytes")
    e(f"    v_and_b32 v{vT2}, 15, v0")
    e(f"    v_lshl_add_u32 v{vT1}, v{vT2}, 2, v{vT1}")
    e(f"    s_lshl_b32 s{sTmp}, s{sWave}, 10")
    e(f"    v_add_u32 v{vT1}, s{sTmp}, v{vT1}")
    e(f"    v_mov_b32 v{vT}, s{sTmp}")
    e(f"    v_cmp_gt_u32 vcc, 8, v{vT2}")
    e(f"    s_and_saveexec_b64 s[{sEx}:{sEx+1}], vcc")
    for r in range(4):
        e(f"    ds_write_b32 v{vT1}, v{vAL+r} offset:{32*r}")
    e(f"    ds_write_b32 v{vT}, v{vNeg} offset:512")
    e(f"    ds_write_b32 v{vT}, v{vL} offset:516")
    e(f"    s_mov_b64 exec, s[{sEx}:{sEx+1}]")
    e("    s_waitcnt vmcnt(0) lgkmcnt(0)")
    e("    s_barrier")
    e(f"    s_cmp_lg_u32 s{sWave}, 0")
    e(f"    s_cbranch_scc1 L_end")
    e(f"    v_lshlrev_b32 v{vT1}, 3, v0")
    e(f"    v_mov_b32 v{vT2}, 0")
    for w in range(wpw):
        b = vRing + 4 * w
        e(f"    ds_read_b64 v[{b}:{b+1}], v{vT1} offset:{1024*w}")
        e(f"    ds_read_b64 v[{b+2}:{b+3}], v{vT2} offset:{1024*w+512}")
    e("    s_waitcnt lgkmcnt(0)")

    def combine(n, base, dst):
        e(f"    v_mov_b32 v{dst+2}, v{base+2}")
        for i in range(1, n):
            e(f"    v_min_f32 v{dst+2}, v{dst+2}, v{base+4*i+2}")
        for i in range(n):
            e(f"    v_sub_f32 v{base+4*i+2}, v{dst+2}, v{base+4*i+2}")
        for i in range(n):
            e(f"    v_exp_f32 v{base+4*i+2}, v{base+4*i+2}")
        e("    s_nop 0")
        for i in range(n):
            b = base + 4 * i
            if i == 0:
                e(f"    v_mul_f32 v{dst}, v{b}, v{b+2}")
                e(f"    v_mul_f32 v{dst+1}, v{b+1}, v{b+2}")
                e(f"    v_mul_f32 v{dst+3}, v{b+3}, v{b+2}")
            else:
                e(f"    v_fmac_f32 v{dst}, v{b}, v{b+2}")
                e(f"    v_fmac_f32 v{dst+1}, v{b+1}, v{b+2}")
                e(f"    v_fmac_f32 v{dst+3}, v{b+3}, v{b+2}")

    combine(wpw, vRing, vBA)
    e(f"    s_lshl_b32 s{sTmp}, s{sHead}, {lg(S)}")
    e(f"    s_add_u32 s{sTmp2}, s{sTmp}, s{sSplit}")
    e(f"    s_lshl_b32 s{sTmp2}, s{sTmp2}, 10")
    e(f"    s_lshl_b32 s{sTmp}, s{sTmp}, 10")
    if twok:
        e(f"    buffer_store_dwordx4 {r4(vBA)}, v{vVoff}, s[{sWS}:{sWS+3}], s{sTmp2} offen")
        e("    s_endpgm")
    else:
        e(f"    buffer_store_dwordx4 {r4(vBA)}, v{vVoff}, s[{sWS}:{sWS+3}], s{sTmp2} offen sc1")
        e(f"    s_lshl_b32 s{sTmp2}, s{sHead}, 3")
        e(f"    v_mov_b32 v{vX}, 1")
        e("    s_waitcnt vmcnt(0)")
        e(f"    s_mov_b64 exec, 1")
        e(f"    buffer_atomic_add v{vX}, off, s[{sDBG}:{sDBG+3}], s{sTmp2} sc0 sc1")
        e("    s_waitcnt vmcnt(0)")
        e(f"    v_readfirstlane_b32 s{sTmp2}, v{vX}")
        e(f"    s_mov_b64 exec, -1")
        e(f"    s_cmp_lg_u32 s{sTmp2}, {S-1}")
        e(f"    s_cbranch_scc1 L_end")
        final(e, S, vRing, vBA, vVoff, vX, sWS, sOUT, sTmp, sTmp2, sHead, combine, "sc1")
    e("L_end:")
    e("    s_endpgm")
    if compute:
        for s in range(D):
            e(f"L_rare{s}:")
            e("    s_nop 1")
            e(f"    v_max_f32_dpp v{vX}, v{vT}, v{vT} row_ror:4 row_mask:0xf bank_mask:0xf")
            e("    s_nop 1")
            e(f"    v_max_f32_dpp v{vX}, v{vX}, v{vX} row_ror:8 row_mask:0xf bank_mask:0xf")
            e("    s_nop 1")
            for r in range(4):
                e(f"    v_readlane_b32 s{sR0+r}, v{vX}, {16*r}")
            e("    s_nop 1")
            e(f"    v_mov_b32 v{vX}, s{sR0}")
            for r in range(1, 4):
                e(f"    v_max_f32 v{vX}, s{sR0+r}, v{vX}")
            e(f"    v_sub_f32 v{vT}, v{vT}, v{vX}")
            e(f"    v_sub_f32 v{vNeg}, v{vNeg}, v{vX}")
            e(f"    v_max_f32 v{vX}, 0, v{vX}")
            e(f"    v_exp_f32 v{vX}, -v{vX}")
            e(f"    s_mov_b32 s{sThr}, 0")
            e(f"    v_mul_f32 v{vL}, v{vL}, v{vX}")
            for r in range(4):
                e(f"    v_mul_f32 v{vAL+r}, v{vAL+r}, v{vX}")
                e(f"    v_mul_f32 v{vAH+r}, v{vAH+r}, v{vX}")
            e(f"    s_branch L_back{s}")

    if twok:
        e(".globl combine_kernel")
        e(".p2align 8")
        e(".type combine_kernel,@function")
        e("combine_kernel:")
        e("    s_cmp_ge_u32 s2, 32")
        e("    s_cbranch_scc1 L_end2")
        e("    s_load_dwordx2 s[10:11], s[0:1], 24")
        e("    s_load_dwordx2 s[14:15], s[0:1], 40")
        e(f"    s_mov_b32 s{sHead}, s2")
        e(f"    v_lshlrev_b32 v{vVoff}, 4, v0")
        e(f"    s_lshl_b32 s{sTmp}, s{sHead}, {lg(S)+10}")
        e(f"    s_mov_b32 s{sWS+2}, {nwg*1024}")
        e(f"    s_mov_b32 s{sWS+3}, 0x00020000")
        e(f"    s_mov_b32 s{sOUT+2}, 0x2000")
        e(f"    s_mov_b32 s{sOUT+3}, 0x00020000")
        e("    s_waitcnt lgkmcnt(0)")
        e(f"    s_mov_b32 s{sWS}, s14")
        e(f"    s_mov_b32 s{sWS+1}, s15")
        e(f"    s_mov_b32 s{sOUT}, s10")
        e(f"    s_mov_b32 s{sOUT+1}, s11")
        final(e, S, vRing, vBA, vVoff, vX, sWS, sOUT, sTmp, sTmp2, sHead, combine, "")
        e("L_end2:")
        e("    s_endpgm")

    acc = (nvgpr + 3) // 4 * 4
    e('.section .rodata,"a"')
    e(".p2align 6")
    names = [f"{NAME}_kernel"] + (["combine_kernel"] if twok else [])
    for nm in names:
        nv = nvgpr if nm != "combine_kernel" else vRing + 4 * S
        ac = (nv + 3) // 4 * 4
        e(".p2align 6")
        e(f".amdhsa_kernel {nm}")
        e(f"  .amdhsa_next_free_vgpr {nv}")
        e(f"  .amdhsa_next_free_sgpr 64")
        e(f"  .amdhsa_accum_offset {ac}")
        e("  .amdhsa_group_segment_fixed_size 0")
        e("  .amdhsa_kernarg_size 48")
        e("  .amdhsa_user_sgpr_count 2")
        e("  .amdhsa_user_sgpr_kernarg_segment_ptr 1")
        e("  .amdhsa_system_sgpr_workgroup_id_x 1")
        e(".end_amdhsa_kernel")
    return "\n".join(L) + "\n"


def final(e, S, vRing, vBA, vVoff, vX, sWS, sOUT, sTmp, sTmp2, sHead, combine, fl):
    for i in range(S):
        b = vRing + 4 * i
        if i and i % 4 == 0:
            e(f"    s_add_u32 s{sTmp}, s{sTmp}, 4096")
        o = f" offset:{(i%4)*1024}" if i % 4 else ""
        e(f"    buffer_load_dwordx4 v[{b}:{b+3}], v{vVoff}, s[{sWS}:{sWS+3}], s{sTmp} offen{o} {fl}".rstrip())
    e(f"    s_lshl_b32 s{sTmp2}, s{sHead}, 8")
    e(f"    v_lshrrev_b32 v{vX}, 2, v{vVoff}      ; lane*4")
    e("    s_waitcnt vmcnt(0)")
    combine(S, vRing, vBA)
    e(f"    v_rcp_f32 v{vBA+3}, v{vBA+3}")
    e("    s_nop 0")
    e(f"    v_mul_f32 v{vBA}, v{vBA}, v{vBA+3}")
    e(f"    v_mul_f32 v{vBA+1}, v{vBA+1}, v{vBA+3}")
    e(f"    v_cvt_pk_bf16_f32 v{vBA}, v{vBA}, v{vBA+1}")
    e(f"    buffer_store_dword v{vBA}, v{vX}, s[{sOUT}:{sOUT+3}], s{sTmp2} offen")


if __name__ == "__main__":
    out = sys.argv[1]
    kw = {}
    for a in sys.argv[2:]:
        k, v = a.split("=", 1)
        try:
            v = int(v)
        except ValueError:
            v = v.replace("+", " ")
        kw[k] = v
    open(out, "w").write(gen(**kw))
```

```python
import sys
import math
import struct

NAME = "standalone__gqa_softmax__decode"

HEADER = """; Kernarg layout for this problem (48 bytes, ptrs only, base s[0:1]):
"""


def lg(x):
    r = int(math.log2(x))
    assert 1 << r == x, x
    return r


def gen(nwg=256, wpw=2, depth=4, i0=24, kfl="nt", vfl="nt", compute=1, stamp=0, tlb=0, empty=0, cws=1, cstride=4352, rot=0, fake=0, afl="sc0"):
    S = nwg // 32
    W = S * wpw
    D = depth
    NC = 2048 // D
    assert 2048 % D == 0
    I0 = i0
    assert I0 >= 2 and I0 * W <= NC
    CB = D * 4096
    L = []
    e = L.append

    vKoff, vVoff = 1, 2
    vT1, vT2, vT, vP, vPk, vL, vNeg, vC, vX = 3, 4, 5, 6, 7, 8, 9, 10, 11
    vM = 12
    vQ = 16
    vS = 32
    vBA = 36
    vBB = 40
    vAL = 44
    vAH = 48
    vSt = 52
    vAt = 53
    vTl = 54
    vFl = 55
    vRing = 56
    nvgpr = max(vRing + 32 * D, vRing + 4 * max(S, wpw) + 8)
    assert nvgpr <= 256, nvgpr

    def K(s, c):
        b = vRing + 32 * s + 4 * c
        return f"v[{b}:{b+3}]"

    def V(s, c):
        b = vRing + 32 * s + 16 + 4 * c
        return f"v[{b}:{b+3}]"

    def r4(b):
        return f"v[{b}:{b+3}]"

    sK, sV, sQ, sWS, sOUT, sDBG = 16, 20, 24, 28, 32, 36
    sHead, sSplit, sWave, sOff, sN, sThr, sI, sTmp, sTmp2, sCnt = 40, 41, 42, 43, 44, 45, 46, 47, 48, 49
    sR0 = 50
    sEx = 54
    sT0 = 56
    sT1 = 58
    sCT = 60
    sFl = 64
    sRot = 65
    sOwn = 66
    CBASE = 1 << 20

    lds_bytes = wpw * 1024
    e(HEADER.rstrip())
    e(f"; @launch grid=({nwg},1,1) block=({wpw*64},1,1) lds={lds_bytes}")
    e('.amdgcn_target "amdgcn-amd-amdhsa--gfx950"')
    e(".text")
    e(f".globl {NAME}_kernel")
    e(".p2align 8")
    e(f".type {NAME}_kernel,@function")
    e(f"{NAME}_kernel:")
    if empty:
        e("    s_endpgm")
    e(f"    s_cmp_ge_u32 s2, {nwg}")
    e(f"    s_cbranch_scc1 L_end")
    e("    s_load_dwordx8 s[4:11], s[0:1], 0")
    e("    s_load_dwordx4 s[12:15], s[0:1], 32")
    if stamp:
        e(f"    s_memrealtime s[{sT0}:{sT0+1}]")
    e(f"    s_lshr_b32 s{sHead}, s2, {lg(S)}")
    e(f"    s_and_b32 s{sSplit}, s2, {S-1}")
    e(f"    v_lshrrev_b32 v{vX}, 6, v0")
    e(f"    v_and_b32 v0, 63, v0                ; lane")
    e(f"    v_readfirstlane_b32 s{sWave}, v{vX}")
    e(f"    v_lshlrev_b32 v{vVoff}, 4, v0")
    e(f"    v_and_b32 v{vT1}, 3, v0              ; b")
    e(f"    v_lshlrev_b32 v{vT1}, 4, v{vT1}       ; b*16")
    e(f"    v_lshrrev_b32 v{vT2}, 4, v0          ; g")
    e(f"    v_lshl_add_u32 v{vT1}, v{vT2}, 6, v{vT1}")
    e(f"    v_bfe_u32 v{vT2}, v0, 2, 2")
    e(f"    v_lshl_add_u32 v{vKoff}, v{vT2}, 8, v{vT1}")
    e(f"    s_lshl_b32 s{sN}, s{sSplit}, {lg(wpw)}")
    e(f"    s_add_u32 s{sN}, s{sN}, s{sWave}")
    e(f"    s_mul_i32 s{sOff}, s{sN}, {CB}")
    if rot:
        assert rot % CB == 0
        e(f"    s_mul_i32 s{sRot}, s{sHead}, {rot}")
        e(f"    s_add_u32 s{sOff}, s{sOff}, s{sRot}")
        e(f"    s_and_b32 s{sOff}, s{sOff}, 0x7fffff")
    e(f"    s_lshl_b32 s{sTmp}, s{sHead}, 23")
    e(f"    s_lshl_b32 s{sTmp2}, s{sHead}, 8      ; head*256")
    e(f"    s_mov_b32 s{sK+2}, 0x800000")
    e(f"    s_mov_b32 s{sK+3}, 0x00020000")
    e(f"    s_mov_b32 s{sV+2}, 0x800000")
    e(f"    s_mov_b32 s{sV+3}, 0x00020000")
    e(f"    s_mov_b32 s{sQ+2}, 0x2000")
    e(f"    s_mov_b32 s{sQ+3}, 0x00020000")
    e("    s_waitcnt lgkmcnt(0)")
    e(f"    s_mov_b32 s{sQ}, s4")
    e(f"    s_mov_b32 s{sQ+1}, s5")
    e(f"    s_add_u32 s{sK}, s6, s{sTmp}")
    e(f"    s_addc_u32 s{sK+1}, s7, 0")
    e(f"    s_add_u32 s{sV}, s8, s{sTmp}")
    e(f"    s_addc_u32 s{sV+1}, s9, 0")
    if cws:
        e(f"    s_add_u32 s{sCT}, s14, {CBASE}")
        e(f"    s_addc_u32 s{sCT+1}, s15, 0")
        e(f"    s_mov_b32 s{sCT+2}, {32*cstride}")
        e(f"    s_mov_b32 s{sCT+3}, 0x00020000")
        e(f"    s_mul_i32 s{sCnt}, s{sHead}, {cstride}")
        e(f"    s_lshl_b32 s{sOwn}, s{sN}, 8")
        e(f"    s_add_u32 s{sOwn}, s{sOwn}, 256")
        e(f"    s_add_u32 s{sOwn}, s{sOwn}, s{sCnt}")
        e(f"    s_cmp_lg_u32 s{sN}, 0")
        e(f"    s_cbranch_scc1 L_noinit")
        e(f"    v_mov_b32 v{vAt}, 0")
        e(f"    s_mov_b64 exec, 3")
        e(f"    v_lshlrev_b32 v{vTl}, 2, v0")
        e(f"    buffer_store_dword v{vAt}, v{vTl}, s[{sCT}:{sCT+3}], s{sCnt} offen sc0 sc1")
        e(f"    s_mov_b64 exec, -1")
        e("L_noinit:")
    e(f"    buffer_load_dwordx4 {r4(vBA)}, v{vT1}, s[{sQ}:{sQ+3}], s{sTmp2} offen")

    def loadK(s):
        for c in range(4):
            o = f" offset:{c*1024}" if c else ""
            e(f"    buffer_load_dwordx4 {K(s,c)}, v{vKoff}, s[{sK}:{sK+3}], s{sOff} offen{o} {kfl}".rstrip())

    def loadV(s):
        for c in range(4):
            o = f" offset:{c*1024}" if c else ""
            e(f"    buffer_load_dwordx4 {V(s,c)}, v{vVoff}, s[{sV}:{sV+3}], s{sOff} offen{o} {vfl}".rstrip())

    for j in range(D):
        if j:
            e(f"    s_add_u32 s{sOff}, s{sOff}, 4096")
        loadK(j)
        loadV(j)
    ntl = 0
    if tlb:
        e(f"    v_lshlrev_b32 v{vTl}, 21, v0")
        e(f"    v_add_u32 v{vTl}, 0x1fffc0, v{vTl}")
        e(f"    s_mov_b64 exec, 15")
        e(f"    buffer_load_dword v{vAt}, v{vTl}, s[{sK}:{sK+3}], 0 offen {kfl}")
        e(f"    buffer_load_dword v{vAt}, v{vTl}, s[{sV}:{sV+3}], 0 offen {vfl}")
        e(f"    s_mov_b64 exec, -1")
        ntl = 2
    e(f"    s_mov_b32 s{sDBG}, s12")
    e(f"    s_mov_b32 s{sDBG+1}, s13")
    e(f"    s_mov_b32 s{sDBG+2}, 256")
    e(f"    s_mov_b32 s{sDBG+3}, 0x00020000")
    if cws:
        e(f"    s_lshl_b32 s{sFl}, s{sHead}, 2")
        sC = sCT
    else:
        e(f"    s_lshl_b32 s{sCnt}, s{sHead}, 3")
        sC = sDBG
    e(f"    s_mov_b32 s{sI}, 0")
    if stamp >= 2:
        e(f"    s_mov_b32 m0, 0")
        e(f"    v_mov_b32 v{vSt}, 0")
    e(f"    s_mov_b32 s{sThr}, 0xff800000")
    e(f"    v_and_b32 v{vX}, 1, v0")
    e(f"    v_lshlrev_b32 v{vX}, 4, v{vX}")
    e(f"    v_mov_b32 v{vP}, 0xffff")
    e(f"    v_lshlrev_b32 v{vP}, v{vX}, v{vP}")
    e(f"    v_bfe_u32 v{vX}, v0, 1, 2            ; (lane&7)>>1")
    for r in range(4):
        e(f"    v_cmp_eq_u32 vcc, {r}, v{vX}")
        e(f"    s_nop 1")
        e(f"    v_cndmask_b32 v{vM+r}, 0, v{vP}, vcc")
    scale = (128 ** -0.5) * math.log2(math.e)
    cbits = struct.unpack("<I", struct.pack("<f", scale))[0]
    e(f"    v_mov_b32 v{vC}, 0x{cbits:08x}       ; D^-0.5 * log2(e)")
    e(f"    v_mov_b32 v{vL}, 0")
    e(f"    v_mov_b32 v{vNeg}, 0")
    for r in range(4):
        e(f"    v_mov_b32 v{vAL+r}, 0")
        e(f"    v_mov_b32 v{vAH+r}, 0")
    e(f"    s_waitcnt vmcnt({min(63, 8*D+ntl)})")
    if cws:
        e(f"    s_cmp_lg_u32 s{sN}, 0")
        e(f"    s_cbranch_scc1 L_noflag")
        e(f"    v_mov_b32 v{vAt}, 1")
        e(f"    s_mov_b64 exec, 1")
        e(f"    buffer_store_dword v{vAt}, off, s[{sDBG}:{sDBG+3}], s{sFl} sc0 sc1")
        e(f"    s_mov_b64 exec, -1")
        e("L_noflag:")
    for c in range(4):
        e(f"    v_cmp_eq_u32 vcc, {c}, v{vT2}")
        e(f"    s_nop 1")
        for r in range(4):
            e(f"    v_cndmask_b32 v{vQ+4*c+r}, 0, v{vBA+r}, vcc")
    e("    s_nop 1")

    rares = []
    fully_static = (I0 * W == NC)
    nstat = I0 if fully_static else I0 - 2
    assert not (cws and (fully_static or nstat < 1))

    def body(tag, dyn):
        for s in range(D):
            wn = 8 * D - 4 + (1 if (dyn and s > 0) else 0)
            wn2 = 8 * D - 4 + (1 if dyn else 0)
            assert wn2 <= 63
            e(f"    s_waitcnt vmcnt({wn})")
            nfill = 0
            if compute:
                e(f"    v_mfma_f32_16x16x32_bf16 {r4(vS)}, {K(s,0)}, {r4(vQ)}, 0")
                for c in range(1, 4):
                    e(f"    v_mfma_f32_16x16x32_bf16 {r4(vS)}, {K(s,c)}, {r4(vQ+4*c)}, {r4(vS)}")
            if s == 0:
                if dyn == 2:
                    if fake:
                        e(f"    v_readfirstlane_b32 s{sTmp}, v{vAt}")
                        e(f"    v_mov_b32 v{vAt}, 1")
                        e(f"    s_add_u32 s{sN}, s{sN}, {W}")
                    else:
                        e(f"    v_readfirstlane_b32 s{sN}, v{vAt}")
                        e(f"    v_mov_b32 v{vAt}, 1")
                        e(f"    s_add_u32 s{sN}, s{sN}, {I0*W}")
                    e(f"    s_min_u32 s{sN}, s{sN}, {NC}")
                    nfill += 4
                else:
                    e(f"    s_add_u32 s{sN}, s{sN}, {W}")
                    nfill += 1
                    if dyn:
                        if cws:
                            e(f"    v_readfirstlane_b32 s{sTmp}, v{vFl}")
                            e(f"    s_cmp_eq_u32 s{sTmp}, 0")
                            e(f"    s_cbranch_scc1 L_spin")
                            e("L_spun:")
                        e(f"    v_mov_b32 v{vAt}, 1")
                        nfill += 1
                    elif cws:
                        e(f"    s_cmp_lg_u32 s{sI}, {nstat-1}")
                        e(f"    s_cbranch_scc1 L_nofl")
                        e(f"    s_mov_b64 exec, 1")
                        e(f"    buffer_load_dword v{vFl}, off, s[{sDBG}:{sDBG+3}], s{sFl} sc0 sc1")
                        e(f"    s_mov_b64 exec, -1")
                        e("L_nofl:")
                if dyn:
                    e(f"    s_mov_b64 exec, 1")
                    if fake == 2:
                        e(f"    buffer_atomic_add v{vAt}, off, s[{sC}:{sC+3}], s{sCnt}")
                    elif fake == 3:
                        e(f"    buffer_load_dword v{vAt}, off, s[{sC}:{sC+3}], s{sCnt} sc1")
                    elif fake == 4:
                        e(f"    buffer_atomic_add v{vAt}, off, s[{sC}:{sC+3}], s{sOwn} {afl}")
                    elif fake == 5:
                        e(f"    buffer_store_dword v{vAt}, off, s[{sC}:{sC+3}], s{sOwn} sc1")
                    else:
                        e(f"    buffer_atomic_add v{vAt}, off, s[{sC}:{sC+3}], s{sCnt} {afl}")
                    e(f"    s_mov_b64 exec, -1")
                    nfill += 3
                e(f"    s_mul_i32 s{sOff}, s{sN}, {CB}")
                nfill += 1
                if rot:
                    e(f"    s_add_u32 s{sOff}, s{sOff}, s{sRot}")
                    e(f"    s_and_b32 s{sOff}, s{sOff}, 0x7fffff")
                    nfill += 2
                    if dyn == 2 or fully_static:
                        e(f"    s_cmp_lt_u32 s{sN}, {NC}")
                        e(f"    s_cselect_b32 s{sOff}, s{sOff}, 0x800000")
                        nfill += 2
            else:
                e(f"    s_add_u32 s{sOff}, s{sOff}, 4096")
                nfill += 1
            loadK(s)
            nfill += 4
            if compute:
                e(f"    v_mov_b32 v{vT1}, v{vNeg}")
                nfill += 1
                pad = max(8 - nfill, 2)
                e(f"    s_nop {pad-1}")
                e(f"    v_fmac_f32_dpp v{vT1}, v{vS+0}, v{vC} quad_perm:[0,0,0,0] row_mask:0xf bank_mask:0xf")
                e(f"    v_mul_f32_dpp v{vT2}, v{vS+1}, v{vC} quad_perm:[1,1,1,1] row_mask:0xf bank_mask:0xf")
                e(f"    s_nop 0")
                e(f"    v_fmac_f32_dpp v{vT1}, v{vS+2}, v{vC} quad_perm:[2,2,2,2] row_mask:0xf bank_mask:0xf")
                e(f"    v_fmac_f32_dpp v{vT2}, v{vS+3}, v{vC} quad_perm:[3,3,3,3] row_mask:0xf bank_mask:0xf")
                e(f"    v_add_f32 v{vT}, v{vT1}, v{vT2}")
                e(f"    v_cmp_lt_f32 vcc, s{sThr}, v{vT}")
                e(f"    s_cbranch_vccnz L_rare_{tag}{s}")
                e(f"L_back_{tag}{s}:")
                rares.append(f"{tag}{s}")
                e(f"    v_exp_f32 v{vP}, v{vT}")
                e(f"    s_nop 0")
                e(f"    v_cvt_pk_bf16_f32 v{vPk}, v{vP}, v{vP}")
                e(f"    v_add_f32 v{vL}, v{vL}, v{vP}")
                e(f"    v_and_b32 v{vBA+0}, v{vPk}, v{vM+0}")
                e(f"    v_and_b32 v{vBA+1}, v{vPk}, v{vM+1}")
                e(f"    v_and_b32 v{vBB+2}, v{vPk}, v{vM+2}")
                e(f"    v_and_b32 v{vBB+3}, v{vPk}, v{vM+3}")
                e(f"    v_and_b32_dpp v{vBA+2}, v{vPk}, v{vM+2} row_shr:4 row_mask:0xf bank_mask:0xf bound_ctrl:0")
                e(f"    v_and_b32_dpp v{vBA+3}, v{vPk}, v{vM+3} row_shr:4 row_mask:0xf bank_mask:0xf bound_ctrl:0")
                e(f"    v_and_b32_dpp v{vBB+0}, v{vPk}, v{vM+0} row_shl:4 row_mask:0xf bank_mask:0xf bound_ctrl:0")
                e(f"    v_and_b32_dpp v{vBB+1}, v{vPk}, v{vM+1} row_shl:4 row_mask:0xf bank_mask:0xf bound_ctrl:0")
            e(f"    s_waitcnt vmcnt({wn2})")
            if compute:
                e(f"    v_mfma_f32_16x16x32_bf16 {r4(vAL)}, {V(s,0)}, {r4(vBA)}, {r4(vAL)}")
                e(f"    v_mfma_f32_16x16x32_bf16 {r4(vAH)}, {V(s,2)}, {r4(vBA)}, {r4(vAH)}")
                e(f"    v_mfma_f32_16x16x32_bf16 {r4(vAL)}, {V(s,1)}, {r4(vBB)}, {r4(vAL)}")
                e(f"    v_mfma_f32_16x16x32_bf16 {r4(vAH)}, {V(s,3)}, {r4(vBB)}, {r4(vAH)}")
            loadV(s)

    def st_top():
        if stamp >= 2:
            e(f"    s_memrealtime s[{sT1}:{sT1+1}]")

    def st_bot():
        if stamp >= 2:
            e("    s_waitcnt lgkmcnt(0)")
            e(f"    v_writelane_b32 v{vSt}, s{sT1}, m0")
            e(f"    s_add_u32 m0, m0, 1")
            e(f"    s_min_u32 m0, m0, 63")

    if nstat > 0:
        e(".p2align 6")
        e("L_sloop:")
        st_top()
        body("s", 0)
        st_bot()
        e(f"    s_add_u32 s{sI}, s{sI}, 1")
        e(f"    s_cmp_lt_u32 s{sI}, {nstat}")
        e(f"    s_cbranch_scc1 L_sloop")
    if not fully_static:
        st_top()
        body("t", 1)
        st_bot()
        e(".p2align 6")
        e("L_dloop:")
        st_top()
        body("d", 2)
        st_bot()
        e(f"    s_cmp_lt_u32 s{sN}, {NC}")
        e(f"    s_cbranch_scc1 L_dloop")
    e("L_done:")
    e("    s_nop 7")
    e("    s_nop 1")
    e(f"    v_add_f32_dpp v{vX}, v{vL}, v{vL} row_ror:4 row_mask:0xf bank_mask:0xf")
    for r in range(4):
        e(f"    v_add_f32_dpp v{vAL+r}, v{vAH+r}, v{vAL+r} row_shl:8 row_mask:0xf bank_mask:0xf bound_ctrl:0")
    e(f"    v_add_f32_dpp v{vX}, v{vX}, v{vX} row_ror:8 row_mask:0xf bank_mask:0xf")
    e("    s_nop 1")
    for r in range(4):
        e(f"    v_readlane_b32 s{sR0+r}, v{vX}, {16*r}")
    e("    s_nop 1")
    e(f"    v_mov_b32 v{vL}, s{sR0}")
    for r in range(1, 4):
        e(f"    v_add_f32 v{vL}, s{sR0+r}, v{vL}")
    e(f"    s_mov_b32 s{sWS}, s14")
    e(f"    s_mov_b32 s{sWS+1}, s15")
    e(f"    s_mov_b32 s{sWS+2}, {nwg*1024 + (nwg*wpw*(16+256) + 4096 if stamp else 0)}")
    e(f"    s_mov_b32 s{sWS+3}, 0x00020000")
    e(f"    s_mov_b32 s{sOUT}, s10")
    e(f"    s_mov_b32 s{sOUT+1}, s11")
    e(f"    s_mov_b32 s{sOUT+2}, 0x2000")
    e(f"    s_mov_b32 s{sOUT+3}, 0x00020000")
    if stamp:
        e(f"    s_memrealtime s[{sT1}:{sT1+1}]")
        e(f"    s_getreg_b32 s{sTmp2}, hwreg(HW_REG_XCC_ID)")
        e(f"    s_getreg_b32 s{sR0}, hwreg(HW_REG_HW_ID)")
        e(f"    s_lshl_b32 s{sTmp}, s2, {lg(wpw)}")
        e(f"    s_add_u32 s{sTmp}, s{sTmp}, s{sWave}")
        e(f"    s_lshl_b32 s{sTmp}, s{sTmp}, 4")
        e(f"    s_add_u32 s{sTmp}, s{sTmp}, {nwg*1024}")
        e("    s_waitcnt lgkmcnt(0)")
        e(f"    v_mov_b32 v{vBA}, s{sT0}")
        e(f"    v_mov_b32 v{vBA+1}, s{sT1}")
        e(f"    v_mov_b32 v{vBA+2}, s{sTmp2}")
        if stamp >= 2:
            e(f"    v_mov_b32 v{vBA+3}, m0")
        else:
            e(f"    v_mov_b32 v{vBA+3}, s{sR0}")
        e(f"    s_mov_b64 exec, 1")
        e(f"    buffer_store_dwordx4 {r4(vBA)}, off, s[{sWS}:{sWS+3}], s{sTmp}")
        e(f"    s_mov_b64 exec, -1")
        if stamp >= 2:
            e(f"    s_lshl_b32 s{sTmp}, s2, {lg(wpw)}")
            e(f"    s_add_u32 s{sTmp}, s{sTmp}, s{sWave}")
            e(f"    s_lshl_b32 s{sTmp}, s{sTmp}, 8")
            e(f"    s_add_u32 s{sTmp}, s{sTmp}, {nwg*1024 + nwg*wpw*16}")
            e(f"    v_lshlrev_b32 v{vT1}, 2, v0")
            e(f"    buffer_store_dword v{vSt}, v{vT1}, s[{sWS}:{sWS+3}], s{sTmp} offen")
    e(f"    v_lshrrev_b32 v{vT1}, 4, v0")
    e(f"    v_lshlrev_b32 v{vT1}, 7, v{vT1}       ; g*128 bytes")
    e(f"    v_and_b32 v{vT2}, 15, v0")
    e(f"    v_lshl_add_u32 v{vT1}, v{vT2}, 2, v{vT1}")
    e(f"    s_lshl_b32 s{sTmp}, s{sWave}, 10")
    e(f"    v_add_u32 v{vT1}, s{sTmp}, v{vT1}")
    e(f"    v_mov_b32 v{vT}, s{sTmp}")
    e(f"    v_cmp_gt_u32 vcc, 8, v{vT2}")
    e(f"    s_and_saveexec_b64 s[{sEx}:{sEx+1}], vcc")
    for r in range(4):
        e(f"    ds_write_b32 v{vT1}, v{vAL+r} offset:{32*r}")
    e(f"    ds_write_b32 v{vT}, v{vNeg} offset:512")
    e(f"    ds_write_b32 v{vT}, v{vL} offset:516")
    e(f"    s_mov_b64 exec, s[{sEx}:{sEx+1}]")
    e("    s_waitcnt vmcnt(0) lgkmcnt(0)")
    e("    s_barrier")
    e(f"    s_cmp_lg_u32 s{sWave}, 0")
    e(f"    s_cbranch_scc1 L_end")
    e(f"    v_lshlrev_b32 v{vT1}, 3, v0")
    e(f"    v_mov_b32 v{vT2}, 0")
    for w in range(wpw):
        b = vRing + 4 * w
        e(f"    ds_read_b64 v[{b}:{b+1}], v{vT1} offset:{1024*w}")
        e(f"    ds_read_b64 v[{b+2}:{b+3}], v{vT2} offset:{1024*w+512}")
    e("    s_waitcnt lgkmcnt(0)")

    def combine(n, base, dst):
        e(f"    v_mov_b32 v{dst+2}, v{base+2}")
        for i in range(1, n):
            e(f"    v_min_f32 v{dst+2}, v{dst+2}, v{base+4*i+2}")
        for i in range(n):
            e(f"    v_sub_f32 v{base+4*i+2}, v{dst+2}, v{base+4*i+2}")
        for i in range(n):
            e(f"    v_exp_f32 v{base+4*i+2}, v{base+4*i+2}")
        e("    s_nop 0")
        for i in range(n):
            b = base + 4 * i
            op = "v_mul_f32" if i == 0 else "v_fmac_f32"
            e(f"    {op} v{dst}, v{b}, v{b+2}")
            e(f"    {op} v{dst+1}, v{b+1}, v{b+2}")
            e(f"    {op} v{dst+3}, v{b+3}, v{b+2}")

    combine(wpw, vRing, vBA)
    e(f"    s_lshl_b32 s{sTmp}, s{sHead}, {lg(S)}")
    e(f"    s_add_u32 s{sTmp2}, s{sTmp}, s{sSplit}")
    e(f"    s_lshl_b32 s{sTmp2}, s{sTmp2}, 10")
    e(f"    s_lshl_b32 s{sTmp}, s{sTmp}, 10")
    e(f"    buffer_store_dwordx4 {r4(vBA)}, v{vVoff}, s[{sWS}:{sWS+3}], s{sTmp2} offen sc1")
    e(f"    v_mov_b32 v{vX}, 1")
    e("    s_waitcnt vmcnt(0)")
    e(f"    s_mov_b64 exec, 1")
    e(f"    buffer_atomic_add v{vX}, off, s[{sC}:{sC+3}], s{sCnt} offset:4 {afl}")
    e("    s_waitcnt vmcnt(0)")
    e(f"    v_readfirstlane_b32 s{sTmp2}, v{vX}")
    e(f"    s_mov_b64 exec, -1")
    e(f"    s_cmp_lg_u32 s{sTmp2}, {S-1}")
    e(f"    s_cbranch_scc1 L_end")
    for i in range(S):
        b = vRing + 4 * i
        if i and i % 4 == 0:
            e(f"    s_add_u32 s{sTmp}, s{sTmp}, 4096")
        o = f" offset:{(i%4)*1024}" if i % 4 else ""
        e(f"    buffer_load_dwordx4 v[{b}:{b+3}], v{vVoff}, s[{sWS}:{sWS+3}], s{sTmp} offen{o} sc1")
    e(f"    s_lshl_b32 s{sTmp2}, s{sHead}, 8")
    e(f"    v_lshrrev_b32 v{vX}, 2, v{vVoff}      ; lane*4")
    e("    s_waitcnt vmcnt(0)")
    combine(S, vRing, vBA)
    e(f"    v_rcp_f32 v{vBA+3}, v{vBA+3}")
    e("    s_nop 0")
    e(f"    v_mul_f32 v{vBA}, v{vBA}, v{vBA+3}")
    e(f"    v_mul_f32 v{vBA+1}, v{vBA+1}, v{vBA+3}")
    e(f"    v_cvt_pk_bf16_f32 v{vBA}, v{vBA}, v{vBA+1}")
    e(f"    buffer_store_dword v{vBA}, v{vX}, s[{sOUT}:{sOUT+3}], s{sTmp2} offen")
    if stamp:
        e("    s_waitcnt vmcnt(0)")
        e(f"    s_memrealtime s[{sT1}:{sT1+1}]")
        e(f"    s_lshl_b32 s{sTmp}, s{sHead}, 2")
        e(f"    s_add_u32 s{sTmp}, s{sTmp}, {nwg*1024 + nwg*wpw*(16+256)}")
        e("    s_waitcnt lgkmcnt(0)")
        e(f"    v_mov_b32 v{vBA}, s{sT1}")
        e(f"    s_mov_b64 exec, 1")
        e(f"    buffer_store_dword v{vBA}, off, s[{sWS}:{sWS+3}], s{sTmp}")
    e("L_end:")
    e("    s_endpgm")
    if cws:
        e("L_spin:")
        e(f"    s_mov_b64 exec, 1")
        e(f"    buffer_load_dword v{vFl}, off, s[{sDBG}:{sDBG+3}], s{sFl} sc0 sc1")
        e(f"    s_mov_b64 exec, -1")
        e("    s_waitcnt vmcnt(0)")
        e(f"    v_readfirstlane_b32 s{sTmp}, v{vFl}")
        e(f"    s_cmp_eq_u32 s{sTmp}, 0")
        e(f"    s_cbranch_scc1 L_spin")
        e(f"    s_branch L_spun")
    for tag in rares:
        e(f"L_rare_{tag}:")
        e("    s_nop 1")
        e(f"    v_max_f32_dpp v{vX}, v{vT}, v{vT} row_ror:4 row_mask:0xf bank_mask:0xf")
        e("    s_nop 1")
        e(f"    v_max_f32_dpp v{vX}, v{vX}, v{vX} row_ror:8 row_mask:0xf bank_mask:0xf")
        e("    s_nop 1")
        for r in range(4):
            e(f"    v_readlane_b32 s{sR0+r}, v{vX}, {16*r}")
        e("    s_nop 1")
        e(f"    v_mov_b32 v{vX}, s{sR0}")
        for r in range(1, 4):
            e(f"    v_max_f32 v{vX}, s{sR0+r}, v{vX}")
        e(f"    v_sub_f32 v{vT}, v{vT}, v{vX}")
        e(f"    v_sub_f32 v{vNeg}, v{vNeg}, v{vX}")
        e(f"    v_max_f32 v{vX}, 0, v{vX}")
        e(f"    v_exp_f32 v{vX}, -v{vX}")
        e(f"    s_mov_b32 s{sThr}, 0")
        e(f"    v_mul_f32 v{vL}, v{vL}, v{vX}")
        for r in range(4):
            e(f"    v_mul_f32 v{vAL+r}, v{vAL+r}, v{vX}")
            e(f"    v_mul_f32 v{vAH+r}, v{vAH+r}, v{vX}")
        e(f"    s_branch L_back_{tag}")

    ac = (nvgpr + 3) // 4 * 4
    e('.section .rodata,"a"')
    e(".p2align 6")
    e(f".amdhsa_kernel {NAME}_kernel")
    e(f"  .amdhsa_next_free_vgpr {nvgpr}")
    e(f"  .amdhsa_next_free_sgpr 72")
    e(f"  .amdhsa_accum_offset {ac}")
    e("  .amdhsa_group_segment_fixed_size 0")
    e("  .amdhsa_kernarg_size 48")
    e("  .amdhsa_user_sgpr_count 2")
    e("  .amdhsa_user_sgpr_kernarg_segment_ptr 1")
    e("  .amdhsa_system_sgpr_workgroup_id_x 1")
    e(".end_amdhsa_kernel")
    return "\n".join(L) + "\n"


if __name__ == "__main__":
    out = sys.argv[1]
    kw = {}
    for a in sys.argv[2:]:
        k, v = a.split("=", 1)
        try:
            v = int(v)
        except ValueError:
            v = v.replace("+", " ")
        kw[k] = v
    open(out, "w").write(gen(**kw))
```

```python
import sys
import math
import struct

NAME = "standalone__gqa_softmax__decode"

HEADER = """; Kernarg layout for this problem (48 bytes, ptrs only, base s[0:1]):
"""


def lg(x):
    r = int(math.log2(x))
    assert 1 << r == x, x
    return r


def gen(nwg=256, wpw=2, depth=4, i0=24, kfl="nt", vfl="nt", compute=1, stamp=0, tlb=0, empty=0, cws=1, cstride=4352, rot=0, fake=0, afl="sc0", jb="", nb=""):
    S = nwg // 32
    W = S * wpw
    D = depth
    NC = 2048 // D
    assert 2048 % D == 0
    I0 = i0
    assert I0 >= 2 and I0 * W <= NC
    CB = D * 4096
    nsb = lg(D)
    if jb:
        JB = [int(x) for x in str(jb).split(".")]
    else:
        JB = list(range(8, 12 + nsb))
    assert len(JB) == 4 + nsb and len(set(JB)) == len(JB) and all(8 <= b <= 22 for b in JB)
    NB = [b for b in range(8, 23) if b not in JB]
    if nb:
        pre = [int(x) for x in str(nb).split(".")]
        assert all(b in NB for b in pre)
        NB = pre + [b for b in NB if b not in pre]
    assert 1 << len(NB) == NC
    runs = []
    for i, b in enumerate(NB):
        if runs and runs[-1][1] + runs[-1][2] == b:
            runs[-1][2] += 1
        else:
            runs.append([i, b, 1])
    def sc(x, bits):
        return sum(((x >> i) & 1) << b for i, b in enumerate(bits))
    L = []
    e = L.append

    vKoff, vVoff = 1, 2
    vT1, vT2, vT, vP, vPk, vL, vNeg, vC, vX = 3, 4, 5, 6, 7, 8, 9, 10, 11
    vM = 12
    vQ = 16
    vS = 32
    vBA = 36
    vBB = 40
    vAL = 44
    vAH = 48
    vSt = 52
    vAt = 53
    vTl = 54
    vFl = 55
    vKo = [56, 57, 58, 59]
    vVo = [60, 61, 62, 63]
    vRing = 64
    nvgpr = max(vRing + 32 * D, vRing + 4 * max(S, wpw) + 8)
    assert nvgpr <= 256, nvgpr

    def K(s, c):
        b = vRing + 32 * s + 4 * c
        return f"v[{b}:{b+3}]"

    def V(s, c):
        b = vRing + 32 * s + 16 + 4 * c
        return f"v[{b}:{b+3}]"

    def r4(b):
        return f"v[{b}:{b+3}]"

    sK, sV, sQ, sWS, sOUT, sDBG = 16, 20, 24, 28, 32, 36
    sHead, sSplit, sWave, sOff, sN, sThr, sI, sTmp, sTmp2, sCnt = 40, 41, 42, 43, 44, 45, 46, 47, 48, 49
    sR0 = 50
    sEx = 54
    sT0 = 56
    sT1 = 58
    sCT = 60
    sFl = 64
    sRot = 65
    sOwn = 66
    sBase = 67
    sN2 = 68
    CBASE = 1 << 20

    lds_bytes = wpw * 1024
    e(HEADER.rstrip())
    e(f"; @launch grid=({nwg},1,1) block=({wpw*64},1,1) lds={lds_bytes}")
    e('.amdgcn_target "amdgcn-amd-amdhsa--gfx950"')
    e(".text")
    e(f".globl {NAME}_kernel")
    e(".p2align 8")
    e(f".type {NAME}_kernel,@function")
    e(f"{NAME}_kernel:")
    if empty:
        e("    s_endpgm")
    e(f"    s_cmp_ge_u32 s2, {nwg}")
    e(f"    s_cbranch_scc1 L_end")
    e("    s_load_dwordx8 s[4:11], s[0:1], 0")
    e("    s_load_dwordx4 s[12:15], s[0:1], 32")
    if stamp:
        e(f"    s_memrealtime s[{sT0}:{sT0+1}]")
    e(f"    s_lshr_b32 s{sHead}, s2, {lg(S)}")
    e(f"    s_and_b32 s{sSplit}, s2, {S-1}")
    e(f"    v_lshrrev_b32 v{vX}, 6, v0")
    e(f"    v_and_b32 v0, 63, v0                ; lane")
    e(f"    v_readfirstlane_b32 s{sWave}, v{vX}")
    e(f"    v_lshlrev_b32 v{vVoff}, 4, v0")
    e(f"    v_and_b32 v{vT1}, 3, v0              ; b")
    e(f"    v_lshlrev_b32 v{vT1}, 4, v{vT1}       ; b*16")
    e(f"    v_lshrrev_b32 v{vT2}, 4, v0          ; g")
    e(f"    v_lshl_add_u32 v{vT1}, v{vT2}, 6, v{vT1}")
    e(f"    v_bfe_u32 v{vT2}, v0, 2, 2")
    def keyoff(dst, base, lo):
        e(f"    v_bfe_u32 v{vX}, v0, {lo}, 1")
        e(f"    v_lshl_add_u32 v{dst}, v{vX}, {JB[0]}, v{base}")
        e(f"    v_bfe_u32 v{vX}, v0, {lo+1}, 1")
        e(f"    v_lshl_add_u32 v{dst}, v{vX}, {JB[1]}, v{dst}")
    keyoff(vKo[0], vT1, 2)
    e(f"    v_and_b32 v{vT}, 15, v0")
    e(f"    v_lshlrev_b32 v{vT}, 4, v{vT}")
    keyoff(vVo[0], vT, 4)
    for c in range(1, 4):
        e(f"    v_add_u32 v{vKo[c]}, {sc(c, JB[2:4])}, v{vKo[0]}")
        e(f"    v_add_u32 v{vVo[c]}, {sc(c, JB[2:4])}, v{vVo[0]}")
    e(f"    s_lshl_b32 s{sN}, s{sSplit}, {lg(wpw)}")
    e(f"    s_add_u32 s{sN}, s{sN}, s{sWave}")
    def base(guard):
        n = 0
        src = sN
        if rot:
            e(f"    s_add_u32 s{sN2}, s{sN}, s{sRot}")
            src = sN2
            n += 1
        for i, (sb, db, ln) in enumerate(runs):
            dst = sBase if i == 0 else sTmp
            e(f"    s_bfe_u32 s{dst}, s{src}, 0x{(ln << 16) | sb:x}")
            e(f"    s_lshl_b32 s{dst}, s{dst}, {db}")
            n += 2
            if i:
                e(f"    s_or_b32 s{sBase}, s{sBase}, s{sTmp}")
                n += 1
        if guard:
            e(f"    s_cmp_lt_u32 s{sN}, {NC}")
            e(f"    s_cselect_b32 s{sBase}, s{sBase}, 0x800000")
            n += 2
        return n
    if rot:
        e(f"    s_mul_i32 s{sRot}, s{sHead}, {rot}")
    base(False)
    e(f"    s_lshl_b32 s{sTmp}, s{sHead}, 23")
    e(f"    s_lshl_b32 s{sTmp2}, s{sHead}, 8      ; head*256")
    e(f"    s_mov_b32 s{sK+2}, 0x800000")
    e(f"    s_mov_b32 s{sK+3}, 0x00020000")
    e(f"    s_mov_b32 s{sV+2}, 0x800000")
    e(f"    s_mov_b32 s{sV+3}, 0x00020000")
    e(f"    s_mov_b32 s{sQ+2}, 0x2000")
    e(f"    s_mov_b32 s{sQ+3}, 0x00020000")
    e("    s_waitcnt lgkmcnt(0)")
    e(f"    s_mov_b32 s{sQ}, s4")
    e(f"    s_mov_b32 s{sQ+1}, s5")
    e(f"    s_add_u32 s{sK}, s6, s{sTmp}")
    e(f"    s_addc_u32 s{sK+1}, s7, 0")
    e(f"    s_add_u32 s{sV}, s8, s{sTmp}")
    e(f"    s_addc_u32 s{sV+1}, s9, 0")
    if cws:
        e(f"    s_add_u32 s{sCT}, s14, {CBASE}")
        e(f"    s_addc_u32 s{sCT+1}, s15, 0")
        e(f"    s_mov_b32 s{sCT+2}, {32*cstride}")
        e(f"    s_mov_b32 s{sCT+3}, 0x00020000")
        e(f"    s_mul_i32 s{sCnt}, s{sHead}, {cstride}")
        e(f"    s_lshl_b32 s{sOwn}, s{sN}, 8")
        e(f"    s_add_u32 s{sOwn}, s{sOwn}, 256")
        e(f"    s_add_u32 s{sOwn}, s{sOwn}, s{sCnt}")
        e(f"    s_cmp_lg_u32 s{sN}, 0")
        e(f"    s_cbranch_scc1 L_noinit")
        e(f"    v_mov_b32 v{vAt}, 0")
        e(f"    s_mov_b64 exec, 3")
        e(f"    v_lshlrev_b32 v{vTl}, 2, v0")
        e(f"    buffer_store_dword v{vAt}, v{vTl}, s[{sCT}:{sCT+3}], s{sCnt} offen sc0 sc1")
        e(f"    s_mov_b64 exec, -1")
        e("L_noinit:")
    e(f"    buffer_load_dwordx4 {r4(vBA)}, v{vT1}, s[{sQ}:{sQ+3}], s{sTmp2} offen")

    def soff(s):
        if s == 0:
            return sBase
        return sOff

    def setoff(s):
        if s:
            e(f"    s_add_u32 s{sOff}, s{sBase}, {sc(s, JB[4:])}")
            return 1
        return 0

    def loadK(s):
        for c in range(4):
            e(f"    buffer_load_dwordx4 {K(s,c)}, v{vKo[c]}, s[{sK}:{sK+3}], s{soff(s)} offen {kfl}".rstrip())

    def loadV(s):
        for c in range(4):
            e(f"    buffer_load_dwordx4 {V(s,c)}, v{vVo[c]}, s[{sV}:{sV+3}], s{soff(s)} offen {vfl}".rstrip())

    for j in range(D):
        setoff(j)
        loadK(j)
        loadV(j)
    ntl = 0
    if tlb:
        e(f"    v_lshlrev_b32 v{vTl}, 21, v0")
        e(f"    v_add_u32 v{vTl}, 0x1fffc0, v{vTl}")
        e(f"    s_mov_b64 exec, 15")
        e(f"    buffer_load_dword v{vAt}, v{vTl}, s[{sK}:{sK+3}], 0 offen {kfl}")
        e(f"    buffer_load_dword v{vAt}, v{vTl}, s[{sV}:{sV+3}], 0 offen {vfl}")
        e(f"    s_mov_b64 exec, -1")
        ntl = 2
    e(f"    s_mov_b32 s{sDBG}, s12")
    e(f"    s_mov_b32 s{sDBG+1}, s13")
    e(f"    s_mov_b32 s{sDBG+2}, 256")
    e(f"    s_mov_b32 s{sDBG+3}, 0x00020000")
    if cws:
        e(f"    s_lshl_b32 s{sFl}, s{sHead}, 2")
        sC = sCT
    else:
        e(f"    s_lshl_b32 s{sCnt}, s{sHead}, 3")
        sC = sDBG
    e(f"    s_mov_b32 s{sI}, 0")
    if stamp >= 2:
        e(f"    s_mov_b32 m0, 0")
        e(f"    v_mov_b32 v{vSt}, 0")
    e(f"    s_mov_b32 s{sThr}, 0xff800000")
    e(f"    v_and_b32 v{vX}, 1, v0")
    e(f"    v_lshlrev_b32 v{vX}, 4, v{vX}")
    e(f"    v_mov_b32 v{vP}, 0xffff")
    e(f"    v_lshlrev_b32 v{vP}, v{vX}, v{vP}")
    e(f"    v_bfe_u32 v{vX}, v0, 1, 2            ; (lane&7)>>1")
    for r in range(4):
        e(f"    v_cmp_eq_u32 vcc, {r}, v{vX}")
        e(f"    s_nop 1")
        e(f"    v_cndmask_b32 v{vM+r}, 0, v{vP}, vcc")
    scale = (128 ** -0.5) * math.log2(math.e)
    cbits = struct.unpack("<I", struct.pack("<f", scale))[0]
    e(f"    v_mov_b32 v{vC}, 0x{cbits:08x}       ; D^-0.5 * log2(e)")
    e(f"    v_mov_b32 v{vL}, 0")
    e(f"    v_mov_b32 v{vNeg}, 0")
    for r in range(4):
        e(f"    v_mov_b32 v{vAL+r}, 0")
        e(f"    v_mov_b32 v{vAH+r}, 0")
    e(f"    s_waitcnt vmcnt({min(63, 8*D+ntl)})")
    if cws:
        e(f"    s_cmp_lg_u32 s{sN}, 0")
        e(f"    s_cbranch_scc1 L_noflag")
        e(f"    v_mov_b32 v{vAt}, 1")
        e(f"    s_mov_b64 exec, 1")
        e(f"    buffer_store_dword v{vAt}, off, s[{sDBG}:{sDBG+3}], s{sFl} sc0 sc1")
        e(f"    s_mov_b64 exec, -1")
        e("L_noflag:")
    for c in range(4):
        e(f"    v_cmp_eq_u32 vcc, {c}, v{vT2}")
        e(f"    s_nop 1")
        for r in range(4):
            e(f"    v_cndmask_b32 v{vQ+4*c+r}, 0, v{vBA+r}, vcc")
    e("    s_nop 1")

    rares = []
    fully_static = (I0 * W == NC)
    nstat = I0 if fully_static else I0 - 2
    assert not (cws and (fully_static or nstat < 1))

    def body(tag, dyn):
        for s in range(D):
            wn = 8 * D - 4 + (1 if (dyn and s > 0) else 0)
            wn2 = 8 * D - 4 + (1 if dyn else 0)
            assert wn2 <= 63
            e(f"    s_waitcnt vmcnt({wn})")
            nfill = 0
            if compute:
                e(f"    v_mfma_f32_16x16x32_bf16 {r4(vS)}, {K(s,0)}, {r4(vQ)}, 0")
                for c in range(1, 4):
                    e(f"    v_mfma_f32_16x16x32_bf16 {r4(vS)}, {K(s,c)}, {r4(vQ+4*c)}, {r4(vS)}")
            if s == 0:
                if dyn == 2:
                    if fake:
                        e(f"    v_readfirstlane_b32 s{sTmp}, v{vAt}")
                        e(f"    v_mov_b32 v{vAt}, 1")
                        e(f"    s_add_u32 s{sN}, s{sN}, {W}")
                    else:
                        e(f"    v_readfirstlane_b32 s{sN}, v{vAt}")
                        e(f"    v_mov_b32 v{vAt}, 1")
                        e(f"    s_add_u32 s{sN}, s{sN}, {I0*W}")
                    e(f"    s_min_u32 s{sN}, s{sN}, {NC}")
                    nfill += 4
                else:
                    e(f"    s_add_u32 s{sN}, s{sN}, {W}")
                    nfill += 1
                    if dyn:
                        if cws:
                            e(f"    v_readfirstlane_b32 s{sTmp}, v{vFl}")
                            e(f"    s_cmp_eq_u32 s{sTmp}, 0")
                            e(f"    s_cbranch_scc1 L_spin")
                            e("L_spun:")
                        e(f"    v_mov_b32 v{vAt}, 1")
                        nfill += 1
                    elif cws:
                        e(f"    s_cmp_lg_u32 s{sI}, {nstat-1}")
                        e(f"    s_cbranch_scc1 L_nofl")
                        e(f"    s_mov_b64 exec, 1")
                        e(f"    buffer_load_dword v{vFl}, off, s[{sDBG}:{sDBG+3}], s{sFl} sc0 sc1")
                        e(f"    s_mov_b64 exec, -1")
                        e("L_nofl:")
                if dyn:
                    e(f"    s_mov_b64 exec, 1")
                    if fake == 2:
                        e(f"    buffer_atomic_add v{vAt}, off, s[{sC}:{sC+3}], s{sCnt}")
                    elif fake == 3:
                        e(f"    buffer_load_dword v{vAt}, off, s[{sC}:{sC+3}], s{sCnt} sc1")
                    elif fake == 4:
                        e(f"    buffer_atomic_add v{vAt}, off, s[{sC}:{sC+3}], s{sOwn} {afl}")
                    elif fake == 5:
                        e(f"    buffer_store_dword v{vAt}, off, s[{sC}:{sC+3}], s{sOwn} sc1")
                    else:
                        e(f"    buffer_atomic_add v{vAt}, off, s[{sC}:{sC+3}], s{sCnt} {afl}")
                    e(f"    s_mov_b64 exec, -1")
                    nfill += 3
                nfill += base(dyn == 2 or fully_static)
            else:
                nfill += setoff(s)
            loadK(s)
            nfill += 4
            if compute:
                e(f"    v_mov_b32 v{vT1}, v{vNeg}")
                nfill += 1
                pad = max(8 - nfill, 2)
                e(f"    s_nop {pad-1}")
                e(f"    v_fmac_f32_dpp v{vT1}, v{vS+0}, v{vC} quad_perm:[0,0,0,0] row_mask:0xf bank_mask:0xf")
                e(f"    v_mul_f32_dpp v{vT2}, v{vS+1}, v{vC} quad_perm:[1,1,1,1] row_mask:0xf bank_mask:0xf")
                e(f"    s_nop 0")
                e(f"    v_fmac_f32_dpp v{vT1}, v{vS+2}, v{vC} quad_perm:[2,2,2,2] row_mask:0xf bank_mask:0xf")
                e(f"    v_fmac_f32_dpp v{vT2}, v{vS+3}, v{vC} quad_perm:[3,3,3,3] row_mask:0xf bank_mask:0xf")
                e(f"    v_add_f32 v{vT}, v{vT1}, v{vT2}")
                e(f"    v_cmp_lt_f32 vcc, s{sThr}, v{vT}")
                e(f"    s_cbranch_vccnz L_rare_{tag}{s}")
                e(f"L_back_{tag}{s}:")
                rares.append(f"{tag}{s}")
                e(f"    v_exp_f32 v{vP}, v{vT}")
                e(f"    s_nop 0")
                e(f"    v_cvt_pk_bf16_f32 v{vPk}, v{vP}, v{vP}")
                e(f"    v_add_f32 v{vL}, v{vL}, v{vP}")
                e(f"    v_and_b32 v{vBA+0}, v{vPk}, v{vM+0}")
                e(f"    v_and_b32 v{vBA+1}, v{vPk}, v{vM+1}")
                e(f"    v_and_b32 v{vBB+2}, v{vPk}, v{vM+2}")
                e(f"    v_and_b32 v{vBB+3}, v{vPk}, v{vM+3}")
                e(f"    v_and_b32_dpp v{vBA+2}, v{vPk}, v{vM+2} row_shr:4 row_mask:0xf bank_mask:0xf bound_ctrl:0")
                e(f"    v_and_b32_dpp v{vBA+3}, v{vPk}, v{vM+3} row_shr:4 row_mask:0xf bank_mask:0xf bound_ctrl:0")
                e(f"    v_and_b32_dpp v{vBB+0}, v{vPk}, v{vM+0} row_shl:4 row_mask:0xf bank_mask:0xf bound_ctrl:0")
                e(f"    v_and_b32_dpp v{vBB+1}, v{vPk}, v{vM+1} row_shl:4 row_mask:0xf bank_mask:0xf bound_ctrl:0")
            e(f"    s_waitcnt vmcnt({wn2})")
            if compute:
                e(f"    v_mfma_f32_16x16x32_bf16 {r4(vAL)}, {V(s,0)}, {r4(vBA)}, {r4(vAL)}")
                e(f"    v_mfma_f32_16x16x32_bf16 {r4(vAH)}, {V(s,2)}, {r4(vBA)}, {r4(vAH)}")
                e(f"    v_mfma_f32_16x16x32_bf16 {r4(vAL)}, {V(s,1)}, {r4(vBB)}, {r4(vAL)}")
                e(f"    v_mfma_f32_16x16x32_bf16 {r4(vAH)}, {V(s,3)}, {r4(vBB)}, {r4(vAH)}")
            loadV(s)

    def st_top():
        if stamp >= 2:
            e(f"    s_memrealtime s[{sT1}:{sT1+1}]")

    def st_bot():
        if stamp >= 2:
            e("    s_waitcnt lgkmcnt(0)")
            e(f"    v_writelane_b32 v{vSt}, s{sT1}, m0")
            e(f"    s_add_u32 m0, m0, 1")
            e(f"    s_min_u32 m0, m0, 63")

    if nstat > 0:
        e(".p2align 6")
        e("L_sloop:")
        st_top()
        body("s", 0)
        st_bot()
        e(f"    s_add_u32 s{sI}, s{sI}, 1")
        e(f"    s_cmp_lt_u32 s{sI}, {nstat}")
        e(f"    s_cbranch_scc1 L_sloop")
    if not fully_static:
        st_top()
        body("t", 1)
        st_bot()
        e(".p2align 6")
        e("L_dloop:")
        st_top()
        body("d", 2)
        st_bot()
        e(f"    s_cmp_lt_u32 s{sN}, {NC}")
        e(f"    s_cbranch_scc1 L_dloop")
    e("L_done:")
    e("    s_nop 7")
    e("    s_nop 1")
    e(f"    v_add_f32_dpp v{vX}, v{vL}, v{vL} row_ror:4 row_mask:0xf bank_mask:0xf")
    for r in range(4):
        e(f"    v_add_f32_dpp v{vAL+r}, v{vAH+r}, v{vAL+r} row_shl:8 row_mask:0xf bank_mask:0xf bound_ctrl:0")
    e(f"    v_add_f32_dpp v{vX}, v{vX}, v{vX} row_ror:8 row_mask:0xf bank_mask:0xf")
    e("    s_nop 1")
    for r in range(4):
        e(f"    v_readlane_b32 s{sR0+r}, v{vX}, {16*r}")
    e("    s_nop 1")
    e(f"    v_mov_b32 v{vL}, s{sR0}")
    for r in range(1, 4):
        e(f"    v_add_f32 v{vL}, s{sR0+r}, v{vL}")
    e(f"    s_mov_b32 s{sWS}, s14")
    e(f"    s_mov_b32 s{sWS+1}, s15")
    e(f"    s_mov_b32 s{sWS+2}, {nwg*1024 + (nwg*wpw*(16+256) + 4096 if stamp else 0)}")
    e(f"    s_mov_b32 s{sWS+3}, 0x00020000")
    e(f"    s_mov_b32 s{sOUT}, s10")
    e(f"    s_mov_b32 s{sOUT+1}, s11")
    e(f"    s_mov_b32 s{sOUT+2}, 0x2000")
    e(f"    s_mov_b32 s{sOUT+3}, 0x00020000")
    if stamp:
        e(f"    s_memrealtime s[{sT1}:{sT1+1}]")
        e(f"    s_getreg_b32 s{sTmp2}, hwreg(HW_REG_XCC_ID)")
        e(f"    s_getreg_b32 s{sR0}, hwreg(HW_REG_HW_ID)")
        e(f"    s_lshl_b32 s{sTmp}, s2, {lg(wpw)}")
        e(f"    s_add_u32 s{sTmp}, s{sTmp}, s{sWave}")
        e(f"    s_lshl_b32 s{sTmp}, s{sTmp}, 4")
        e(f"    s_add_u32 s{sTmp}, s{sTmp}, {nwg*1024}")
        e("    s_waitcnt lgkmcnt(0)")
        e(f"    v_mov_b32 v{vBA}, s{sT0}")
        e(f"    v_mov_b32 v{vBA+1}, s{sT1}")
        e(f"    v_mov_b32 v{vBA+2}, s{sTmp2}")
        if stamp >= 2:
            e(f"    v_mov_b32 v{vBA+3}, m0")
        else:
            e(f"    v_mov_b32 v{vBA+3}, s{sR0}")
        e(f"    s_mov_b64 exec, 1")
        e(f"    buffer_store_dwordx4 {r4(vBA)}, off, s[{sWS}:{sWS+3}], s{sTmp}")
        e(f"    s_mov_b64 exec, -1")
        if stamp >= 2:
            e(f"    s_lshl_b32 s{sTmp}, s2, {lg(wpw)}")
            e(f"    s_add_u32 s{sTmp}, s{sTmp}, s{sWave}")
            e(f"    s_lshl_b32 s{sTmp}, s{sTmp}, 8")
            e(f"    s_add_u32 s{sTmp}, s{sTmp}, {nwg*1024 + nwg*wpw*16}")
            e(f"    v_lshlrev_b32 v{vT1}, 2, v0")
            e(f"    buffer_store_dword v{vSt}, v{vT1}, s[{sWS}:{sWS+3}], s{sTmp} offen")
    e(f"    v_lshrrev_b32 v{vT1}, 4, v0")
    e(f"    v_lshlrev_b32 v{vT1}, 7, v{vT1}       ; g*128 bytes")
    e(f"    v_and_b32 v{vT2}, 15, v0")
    e(f"    v_lshl_add_u32 v{vT1}, v{vT2}, 2, v{vT1}")
    e(f"    s_lshl_b32 s{sTmp}, s{sWave}, 10")
    e(f"    v_add_u32 v{vT1}, s{sTmp}, v{vT1}")
    e(f"    v_mov_b32 v{vT}, s{sTmp}")
    e(f"    v_cmp_gt_u32 vcc, 8, v{vT2}")
    e(f"    s_and_saveexec_b64 s[{sEx}:{sEx+1}], vcc")
    for r in range(4):
        e(f"    ds_write_b32 v{vT1}, v{vAL+r} offset:{32*r}")
    e(f"    ds_write_b32 v{vT}, v{vNeg} offset:512")
    e(f"    ds_write_b32 v{vT}, v{vL} offset:516")
    e(f"    s_mov_b64 exec, s[{sEx}:{sEx+1}]")
    e("    s_waitcnt vmcnt(0) lgkmcnt(0)")
    e("    s_barrier")
    e(f"    s_cmp_lg_u32 s{sWave}, 0")
    e(f"    s_cbranch_scc1 L_end")
    e(f"    v_lshlrev_b32 v{vT1}, 3, v0")
    e(f"    v_mov_b32 v{vT2}, 0")
    for w in range(wpw):
        b = vRing + 4 * w
        e(f"    ds_read_b64 v[{b}:{b+1}], v{vT1} offset:{1024*w}")
        e(f"    ds_read_b64 v[{b+2}:{b+3}], v{vT2} offset:{1024*w+512}")
    e("    s_waitcnt lgkmcnt(0)")

    def combine(n, base, dst):
        e(f"    v_mov_b32 v{dst+2}, v{base+2}")
        for i in range(1, n):
            e(f"    v_min_f32 v{dst+2}, v{dst+2}, v{base+4*i+2}")
        for i in range(n):
            e(f"    v_sub_f32 v{base+4*i+2}, v{dst+2}, v{base+4*i+2}")
        for i in range(n):
            e(f"    v_exp_f32 v{base+4*i+2}, v{base+4*i+2}")
        e("    s_nop 0")
        for i in range(n):
            b = base + 4 * i
            op = "v_mul_f32" if i == 0 else "v_fmac_f32"
            e(f"    {op} v{dst}, v{b}, v{b+2}")
            e(f"    {op} v{dst+1}, v{b+1}, v{b+2}")
            e(f"    {op} v{dst+3}, v{b+3}, v{b+2}")

    combine(wpw, vRing, vBA)
    e(f"    s_lshl_b32 s{sTmp}, s{sHead}, {lg(S)}")
    e(f"    s_add_u32 s{sTmp2}, s{sTmp}, s{sSplit}")
    e(f"    s_lshl_b32 s{sTmp2}, s{sTmp2}, 10")
    e(f"    s_lshl_b32 s{sTmp}, s{sTmp}, 10")
    e(f"    buffer_store_dwordx4 {r4(vBA)}, v{vVoff}, s[{sWS}:{sWS+3}], s{sTmp2} offen sc1")
    e(f"    v_mov_b32 v{vX}, 1")
    e("    s_waitcnt vmcnt(0)")
    e(f"    s_mov_b64 exec, 1")
    e(f"    buffer_atomic_add v{vX}, off, s[{sC}:{sC+3}], s{sCnt} offset:4 {afl}")
    e("    s_waitcnt vmcnt(0)")
    e(f"    v_readfirstlane_b32 s{sTmp2}, v{vX}")
    e(f"    s_mov_b64 exec, -1")
    e(f"    s_cmp_lg_u32 s{sTmp2}, {S-1}")
    e(f"    s_cbranch_scc1 L_end")
    for i in range(S):
        b = vRing + 4 * i
        if i and i % 4 == 0:
            e(f"    s_add_u32 s{sTmp}, s{sTmp}, 4096")
        o = f" offset:{(i%4)*1024}" if i % 4 else ""
        e(f"    buffer_load_dwordx4 v[{b}:{b+3}], v{vVoff}, s[{sWS}:{sWS+3}], s{sTmp} offen{o} sc1")
    e(f"    s_lshl_b32 s{sTmp2}, s{sHead}, 8")
    e(f"    v_lshrrev_b32 v{vX}, 2, v{vVoff}      ; lane*4")
    e("    s_waitcnt vmcnt(0)")
    combine(S, vRing, vBA)
    e(f"    v_rcp_f32 v{vBA+3}, v{vBA+3}")
    e("    s_nop 0")
    e(f"    v_mul_f32 v{vBA}, v{vBA}, v{vBA+3}")
    e(f"    v_mul_f32 v{vBA+1}, v{vBA+1}, v{vBA+3}")
    e(f"    v_cvt_pk_bf16_f32 v{vBA}, v{vBA}, v{vBA+1}")
    e(f"    buffer_store_dword v{vBA}, v{vX}, s[{sOUT}:{sOUT+3}], s{sTmp2} offen")
    if stamp:
        e("    s_waitcnt vmcnt(0)")
        e(f"    s_memrealtime s[{sT1}:{sT1+1}]")
        e(f"    s_lshl_b32 s{sTmp}, s{sHead}, 2")
        e(f"    s_add_u32 s{sTmp}, s{sTmp}, {nwg*1024 + nwg*wpw*(16+256)}")
        e("    s_waitcnt lgkmcnt(0)")
        e(f"    v_mov_b32 v{vBA}, s{sT1}")
        e(f"    s_mov_b64 exec, 1")
        e(f"    buffer_store_dword v{vBA}, off, s[{sWS}:{sWS+3}], s{sTmp}")
    e("L_end:")
    e("    s_endpgm")
    if cws:
        e("L_spin:")
        e(f"    s_mov_b64 exec, 1")
        e(f"    buffer_load_dword v{vFl}, off, s[{sDBG}:{sDBG+3}], s{sFl} sc0 sc1")
        e(f"    s_mov_b64 exec, -1")
        e("    s_waitcnt vmcnt(0)")
        e(f"    v_readfirstlane_b32 s{sTmp}, v{vFl}")
        e(f"    s_cmp_eq_u32 s{sTmp}, 0")
        e(f"    s_cbranch_scc1 L_spin")
        e(f"    s_branch L_spun")
    for tag in rares:
        e(f"L_rare_{tag}:")
        e("    s_nop 1")
        e(f"    v_max_f32_dpp v{vX}, v{vT}, v{vT} row_ror:4 row_mask:0xf bank_mask:0xf")
        e("    s_nop 1")
        e(f"    v_max_f32_dpp v{vX}, v{vX}, v{vX} row_ror:8 row_mask:0xf bank_mask:0xf")
        e("    s_nop 1")
        for r in range(4):
            e(f"    v_readlane_b32 s{sR0+r}, v{vX}, {16*r}")
        e("    s_nop 1")
        e(f"    v_mov_b32 v{vX}, s{sR0}")
        for r in range(1, 4):
            e(f"    v_max_f32 v{vX}, s{sR0+r}, v{vX}")
        e(f"    v_sub_f32 v{vT}, v{vT}, v{vX}")
        e(f"    v_sub_f32 v{vNeg}, v{vNeg}, v{vX}")
        e(f"    v_max_f32 v{vX}, 0, v{vX}")
        e(f"    v_exp_f32 v{vX}, -v{vX}")
        e(f"    s_mov_b32 s{sThr}, 0")
        e(f"    v_mul_f32 v{vL}, v{vL}, v{vX}")
        for r in range(4):
            e(f"    v_mul_f32 v{vAL+r}, v{vAL+r}, v{vX}")
            e(f"    v_mul_f32 v{vAH+r}, v{vAH+r}, v{vX}")
        e(f"    s_branch L_back_{tag}")

    ac = (nvgpr + 3) // 4 * 4
    e('.section .rodata,"a"')
    e(".p2align 6")
    e(f".amdhsa_kernel {NAME}_kernel")
    e(f"  .amdhsa_next_free_vgpr {nvgpr}")
    e(f"  .amdhsa_next_free_sgpr 72")
    e(f"  .amdhsa_accum_offset {ac}")
    e("  .amdhsa_group_segment_fixed_size 0")
    e("  .amdhsa_kernarg_size 48")
    e("  .amdhsa_user_sgpr_count 2")
    e("  .amdhsa_user_sgpr_kernarg_segment_ptr 1")
    e("  .amdhsa_system_sgpr_workgroup_id_x 1")
    e(".end_amdhsa_kernel")
    return "\n".join(L) + "\n"


if __name__ == "__main__":
    out = sys.argv[1]
    kw = {}
    for a in sys.argv[2:]:
        k, v = a.split("=", 1)
        try:
            v = int(v)
        except ValueError:
            v = v.replace("+", " ")
        kw[k] = v
    open(out, "w").write(gen(**kw))
```

```python
import sys
import math
import struct

NAME = "standalone__gqa_softmax__decode"

HEADER = """; Kernarg layout for this problem (48 bytes, ptrs only, base s[0:1]):
"""


def lg(x):
    r = int(math.log2(x))
    assert 1 << r == x, x
    return r


def gen(i0=52, kfl="nt", vfl="nt", stamp=0, cstride=4352, rot=72, afl="sc0", jb="8.12.13.15.10.11", nb="",
        epi=1, warm=0, hop=64, evt=4, evtspread=1, rstride=8192, tail="4.4.3.3.2.2.1.1", a1=1, c1=0, ofl="", fast=0, lfirst=0, rfl="sc1", wfl="sc1"):
    nwg, wpw, D = 256, 1, 4
    S = W = 8
    NC = 2048 // D
    I0 = i0
    RD = NC - I0 * W
    assert I0 >= evt + evtspread + 5 and RD > 0
    nsb = lg(D)
    TL = [int(x) for x in str(tail).split(".")]
    assert len(TL) == 8 and all(0 <= x <= 4 for x in TL) and sum(TL) % 4 == 0
    bins = []
    place = {}
    for j in sorted(range(8), key=lambda j: -TL[j]):
        if TL[j] == 0:
            place[j] = (0, 0)
            continue
        for b in range(len(bins)):
            if bins[b] + TL[j] <= 4:
                place[j] = (b, bins[b]); bins[b] += TL[j]
                break
        else:
            place[j] = (len(bins), 0); bins.append(TL[j])
    assert all(b == 4 for b in bins), bins
    NT = len(bins)
    TAILW = sum(((place[j][0] | place[j][1] << 3 | TL[j] << 5) << (8 * j)) for j in range(8))
    T0 = NC - NT
    n1 = RD - NT - c1 * a1
    assert n1 >= 0
    C2 = c1 + n1
    JB = [int(x) for x in str(jb).split(".")]
    assert JB[5] == JB[4] + 1
    assert len(JB) == 4 + nsb and len(set(JB)) == len(JB) and all(8 <= b <= 22 for b in JB)
    NB = [b for b in range(8, 23) if b not in JB]
    if nb:
        pre = [int(x) for x in str(nb).split(".")]
        assert all(b in NB for b in pre)
        NB = pre + [b for b in NB if b not in pre]
    assert 1 << len(NB) == NC
    runs = []
    for i, b in enumerate(NB):
        if runs and runs[-1][1] + runs[-1][2] == b:
            runs[-1][2] += 1
        else:
            runs.append([i, b, 1])

    def sc(x, bits):
        return sum(((x >> i) & 1) << b for i, b in enumerate(bits))
    L = []
    e = L.append

    vOo, vVoff = 1, 2
    vT1, vT2, vT, vP, vPk, vL, vNeg, vC, vX = 3, 4, 5, 6, 7, 8, 9, 10, 11
    vM = 12
    vQ = 16
    vS = 32
    vBA = 36
    vBB = 40
    vAL = 44
    vAH = 48
    vSt = 52
    vAt = 53
    vTl = 54
    vFl = 55
    vKo = [56, 57, 58, 59]
    vVo = [60, 61, 62, 63]
    vRing = 64
    vRec = vRing + 32 * D - 4
    nvgpr = vRec + 32

    def K(s, c):
        b = vRing + 32 * s + 4 * c
        return f"v[{b}:{b+3}]"

    def V(s, c):
        b = vRing + 32 * s + 16 + 4 * c
        return f"v[{b}:{b+3}]"

    def r4(b):
        return f"v[{b}:{b+3}]"

    sK, sV, sQ, sWS, sOUT, sDBG = 16, 20, 24, 28, 32, 36
    sHead, sSplit, sRem, sOff, sN, sThr, sEvt, sTmp, sTmp2, sCnt = 40, 41, 42, 43, 44, 45, 46, 47, 48, 49
    sR0 = 50
    sStr, sSz = 54, 55
    sT0 = 56
    sT1 = 58
    sCT = 60
    sFl = 64
    sRot = 65
    sRec = 66
    sBase = 67
    sN2 = 68
    sOwn = 69
    sM, sS0 = 70, 71
    sE = 72
    sLast = 90
    sRo = 93
    sTW = 88
    CBASE = 1 << 20
    RECS = 32 * rstride
    STB = nwg * 1024 if rstride == 8192 else None
    SBASE = 2 << 20

    e(HEADER.rstrip())
    e(f"; @launch grid=({nwg},1,1) block=(64,1,1) lds=0")
    e('.amdgcn_target "amdgcn-amd-amdhsa--gfx950"')
    e(".text")
    e(f".globl {NAME}_kernel")
    e(".p2align 8")
    e(f".type {NAME}_kernel,@function")
    e(f"{NAME}_kernel:")
    e(f"    s_cmp_ge_u32 s2, {nwg}")
    e(f"    s_cbranch_scc1 L_end")
    e("    s_load_dwordx8 s[4:11], s[0:1], 0")
    e("    s_load_dwordx4 s[12:15], s[0:1], 32")
    if stamp:
        e(f"    s_memrealtime s[{sT0}:{sT0+1}]")
    e(f"    s_lshr_b32 s{sHead}, s2, {lg(S)}")
    e(f"    s_and_b32 s{sSplit}, s2, {S-1}")
    e(f"    v_and_b32 v{vT1}, 3, v0              ; b")
    e(f"    v_lshlrev_b32 v{vT1}, 4, v{vT1}       ; b*16")
    e(f"    v_lshrrev_b32 v{vT2}, 4, v0          ; g")
    e(f"    v_lshl_add_u32 v{vT1}, v{vT2}, 6, v{vT1}")

    def keyoff(dst, base, lo):
        e(f"    v_bfe_u32 v{vX}, v0, {lo}, 1")
        e(f"    v_lshl_add_u32 v{dst}, v{vX}, {JB[0]}, v{base}")
        e(f"    v_bfe_u32 v{vX}, v0, {lo+1}, 1")
        e(f"    v_lshl_add_u32 v{dst}, v{vX}, {JB[1]}, v{dst}")
    keyoff(vKo[0], vT1, 2)
    e(f"    v_and_b32 v{vT}, 15, v0")
    e(f"    v_lshlrev_b32 v{vT}, 4, v{vT}")
    keyoff(vVo[0], vT, 4)
    for c in range(1, 4):
        e(f"    v_add_u32 v{vKo[c]}, {sc(c, JB[2:4])}, v{vKo[0]}")
        e(f"    v_add_u32 v{vVo[c]}, {sc(c, JB[2:4])}, v{vVo[0]}")
    e(f"    s_mov_b32 s{sN}, s{sSplit}")

    def base(guard):
        n = 0
        src = sN
        if rot:
            e(f"    s_add_u32 s{sN2}, s{sN}, s{sRot}")
            src = sN2
            n += 1
        for i, (sb, db, ln) in enumerate(runs):
            dst = sBase if i == 0 else sTmp
            e(f"    s_bfe_u32 s{dst}, s{src}, 0x{(ln << 16) | sb:x}")
            e(f"    s_lshl_b32 s{dst}, s{dst}, {db}")
            n += 2
            if i:
                e(f"    s_or_b32 s{sBase}, s{sBase}, s{sTmp}")
                n += 1
        if guard:
            e(f"    s_add_u32 s{sBase}, s{sBase}, s{sS0}")
            e(f"    s_cmp_lt_u32 0, s{sM}")
            e(f"    s_cselect_b32 s{sOff}, s{sBase}, 0x800000")
            n += 3
        return n
    if rot:
        e(f"    s_mul_i32 s{sRot}, s{sHead}, {rot}")
    base(False)
    e(f"    s_lshl_b32 s{sTmp}, s{sHead}, 23")
    e(f"    s_lshl_b32 s{sTmp2}, s{sHead}, 8      ; head*256")
    e(f"    s_mov_b32 s{sK+2}, 0x800000")
    e(f"    s_mov_b32 s{sK+3}, 0x00020000")
    e(f"    s_mov_b32 s{sV+2}, 0x800000")
    e(f"    s_mov_b32 s{sV+3}, 0x00020000")
    e(f"    s_mov_b32 s{sQ+2}, 0x2000")
    e(f"    s_mov_b32 s{sQ+3}, 0x00020000")
    e("    s_waitcnt lgkmcnt(0)")
    e(f"    s_mov_b32 s{sQ}, s4")
    e(f"    s_mov_b32 s{sQ+1}, s5")
    e(f"    s_add_u32 s{sK}, s6, s{sTmp}")
    e(f"    s_addc_u32 s{sK+1}, s7, 0")
    e(f"    buffer_load_dwordx4 {r4(vBA)}, v{vT1}, s[{sQ}:{sQ+3}], s{sTmp2} offen")

    inloop = [False]

    def soff(s):
        return sBase if (s == 0 and not inloop[0]) else sOff

    def setoff(s):
        if s:
            e(f"    s_add_u32 s{sOff}, s{sBase}, {sc(s, JB[4:])}")
            if inloop[0]:
                e(f"    s_cmp_lt_u32 {s}, s{sM}")
                e(f"    s_cselect_b32 s{sOff}, s{sOff}, 0x800000")
                return 3
            return 1
        return 0

    def loadK(s):
        for c in range(4):
            e(f"    buffer_load_dwordx4 {K(s,c)}, v{vKo[c]}, s[{sK}:{sK+3}], s{soff(s)} offen {kfl}".rstrip())

    def loadV(s):
        for c in range(4):
            e(f"    buffer_load_dwordx4 {V(s,c)}, v{vVo[c]}, s[{sV}:{sV+3}], s{soff(s)} offen {vfl}".rstrip())

    for j in range(D):
        setoff(j)
        loadK(j)
        if j == 0:
            e(f"    s_add_u32 s{sV}, s8, s{sTmp}")
            e(f"    s_addc_u32 s{sV+1}, s9, 0")
        loadV(j)
    e(f"    s_add_u32 s{sCT}, s14, {CBASE}")
    e(f"    s_addc_u32 s{sCT+1}, s15, 0")
    e(f"    s_mov_b32 s{sCT+2}, {32*cstride}")
    e(f"    s_mov_b32 s{sCT+3}, 0x00020000")
    e(f"    s_mul_i32 s{sCnt}, s{sHead}, {cstride}")
    e(f"    s_mov_b32 s{sWS}, s14")
    e(f"    s_mov_b32 s{sWS+1}, s15")
    e(f"    s_mov_b32 s{sWS+2}, {SBASE + (1 << 20) if stamp else RECS}")
    e(f"    s_mov_b32 s{sWS+3}, 0x00020000")
    e(f"    s_add_u32 s{sOUT}, s10, s{sTmp2}")
    e(f"    s_addc_u32 s{sOUT+1}, s11, 0")
    e(f"    s_mov_b32 s{sOUT+2}, 256")
    e(f"    s_mov_b32 s{sOUT+3}, 0x00020000")
    e(f"    s_mov_b32 s{sDBG}, s12")
    e(f"    s_mov_b32 s{sDBG+1}, s13")
    e(f"    s_mov_b32 s{sDBG+2}, 256")
    e(f"    s_mov_b32 s{sDBG+3}, 0x00020000")
    e(f"    s_lshl_b32 s{sFl}, s{sHead}, 2")
    e(f"    s_mul_i32 s{sRec}, s{sHead}, {rstride}")
    e(f"    s_lshl_b32 s{sOwn}, s{sSplit}, 10")
    for i in range(1, S):
        e(f"    s_add_u32 s{sRo+i}, s{sOwn}, {i*1024}")
        e(f"    s_and_b32 s{sRo+i}, s{sRo+i}, {S*1024-1}")
        e(f"    s_add_u32 s{sRo+i}, s{sRo+i}, s{sRec}")
    e(f"    v_lshlrev_b32 v{vVoff}, 4, v0")
    e(f"    v_and_b32 v{vOo}, 7, v0")
    e(f"    v_bfe_u32 v{vX}, v0, 3, 3            ; lane>>3 = g*2 + (j>=8)")
    e(f"    v_lshl_add_u32 v{vOo}, v{vX}, 4, v{vOo}")
    e(f"    v_lshlrev_b32 v{vOo}, 1, v{vOo}")
    e(f"    v_mov_b32 v{vAt}, 0")
    e(f"    v_mov_b32 v{vFl}, 0")
    for r in range(4):
        e(f"    v_mov_b32 v{vAL+r}, 0")
        e(f"    v_mov_b32 v{vAH+r}, 0")
    e(f"    s_cmp_lg_u32 s{sSplit}, 0")
    e(f"    s_cbranch_scc1 L_noinit")
    e(f"    v_lshlrev_b32 v{vTl}, 2, v0")
    e(f"    s_mov_b64 exec, 3")
    e(f"    buffer_store_dword v{vAt}, v{vTl}, s[{sCT}:{sCT+3}], s{sCnt} offen sc0 sc1")
    e(f"    s_mov_b64 exec, -1")
    if epi:
        e(f"    s_add_u32 s{sTmp}, s{sRec}, 4096")
        for i in range(S):
            o = f" offset:{(i%4)*1024}" if i % 4 else ""
            e(f"    buffer_store_dwordx4 {r4(vAL)}, v{vVoff}, s[{sWS}:{sWS+3}], s{sRec if i < 4 else sTmp} offen{o} sc1")
    e("L_noinit:")
    e(f"    s_mov_b32 s{sRem}, {I0-1}")
    e(f"    s_mov_b32 s{sStr}, {W}")
    e(f"    s_mov_b32 s{sM}, 4")
    e(f"    s_mov_b32 s{sS0}, 0")
    e(f"    s_mov_b32 s{sLast}, 0")
    e(f"    s_mov_b32 s{sTW}, 0x{TAILW & 0xffffffff:x}")
    e(f"    s_mov_b32 s{sTW+1}, 0x{TAILW >> 32:x}")
    if evtspread > 1:
        e(f"    s_and_b32 s{sEvt}, s{sHead}, {evtspread-1}")
        e(f"    s_sub_u32 s{sEvt}, {I0-1-evt}, s{sEvt}")
    else:
        e(f"    s_mov_b32 s{sEvt}, {I0-1-evt}")
    if not warm:
        e(f"    s_cmp_eq_u32 s{sSplit}, 0")
        e(f"    s_cselect_b32 s{sEvt}, s{sEvt}, 3")
    if stamp >= 2:
        e(f"    s_mov_b32 m0, 0")
        e(f"    v_mov_b32 v{vSt}, 0")
    e(f"    s_mov_b32 s{sThr}, 0xff800000")
    e(f"    v_bfe_u32 v{vT2}, v0, 2, 2")
    e(f"    v_and_b32 v{vX}, 1, v0")
    e(f"    v_lshlrev_b32 v{vX}, 4, v{vX}")
    e(f"    v_mov_b32 v{vP}, 0xffff")
    e(f"    v_lshlrev_b32 v{vP}, v{vX}, v{vP}")
    e(f"    v_bfe_u32 v{vX}, v0, 1, 2            ; (lane&7)>>1")
    for r in range(4):
        e(f"    v_cmp_eq_u32 vcc, {r}, v{vX}")
        e(f"    s_nop 1")
        e(f"    v_cndmask_b32 v{vM+r}, 0, v{vP}, vcc")
    scale = (128 ** -0.5) * math.log2(math.e)
    cbits = struct.unpack("<I", struct.pack("<f", scale))[0]
    e(f"    v_mov_b32 v{vC}, 0x{cbits:08x}       ; D^-0.5 * log2(e)")
    e(f"    v_mov_b32 v{vL}, 0")
    e(f"    v_mov_b32 v{vNeg}, 0")
    e(f"    s_waitcnt vmcnt({8*D})")
    for c in range(4):
        e(f"    v_cmp_eq_u32 vcc, {c}, v{vT2}")
        e(f"    s_nop 1")
        for r in range(4):
            e(f"    v_cndmask_b32 v{vQ+4*c+r}, 0, v{vBA+r}, vcc")
    e("    s_nop 1")

    rares = []

    def slot(e, s, final):
        tag = f"f{s}" if final else f"{s}"
        wk = 8 * D - 4 - (8 * s if final else 0)
        wv = 8 * D - 4 - (8 * s + 4 if final else 0)
        e(f"    s_waitcnt vmcnt({wk})")
        nfill = 0
        e(f"    v_mfma_f32_16x16x32_bf16 {r4(vS)}, {K(s,0)}, {r4(vQ)}, 0")
        for c in range(1, 4):
            e(f"    v_mfma_f32_16x16x32_bf16 {r4(vS)}, {K(s,c)}, {r4(vQ+4*c)}, {r4(vS)}")
        if not final:
            if s == 0:
                e(f"    s_cmp_le_u32 s{sRem}, s{sEvt}")
                e(f"    s_cbranch_scc1 L_ctl")
                e(f"    s_add_u32 s{sN}, s{sN}, s{sStr}")
                e("L_ret:")
                e(f"    s_sub_u32 s{sRem}, s{sRem}, 1")
                nfill += 4
                nfill += base(True)
            else:
                nfill += setoff(s)
            loadK(s)
            nfill += 4
        e(f"    v_mov_b32 v{vT1}, v{vNeg}")
        nfill += 1
        pad = max(8 - nfill, 2)
        e(f"    s_nop {pad-1}")
        e(f"    v_fmac_f32_dpp v{vT1}, v{vS+0}, v{vC} quad_perm:[0,0,0,0] row_mask:0xf bank_mask:0xf")
        e(f"    v_mul_f32_dpp v{vT2}, v{vS+1}, v{vC} quad_perm:[1,1,1,1] row_mask:0xf bank_mask:0xf")
        e(f"    s_nop 0")
        e(f"    v_fmac_f32_dpp v{vT1}, v{vS+2}, v{vC} quad_perm:[2,2,2,2] row_mask:0xf bank_mask:0xf")
        e(f"    v_fmac_f32_dpp v{vT2}, v{vS+3}, v{vC} quad_perm:[3,3,3,3] row_mask:0xf bank_mask:0xf")
        e(f"    v_add_f32 v{vT}, v{vT1}, v{vT2}")
        e(f"    v_cmp_lt_f32 vcc, s{sThr}, v{vT}")
        e(f"    s_cbranch_vccnz L_rare_{tag}")
        e(f"L_back_{tag}:")
        rares.append(tag)
        e(f"    v_exp_f32 v{vP}, v{vT}")
        e(f"    s_nop 0")
        e(f"    v_cvt_pk_bf16_f32 v{vPk}, v{vP}, v{vP}")
        e(f"    v_add_f32 v{vL}, v{vL}, v{vP}")
        e(f"    v_and_b32 v{vBA+0}, v{vPk}, v{vM+0}")
        e(f"    v_and_b32 v{vBA+1}, v{vPk}, v{vM+1}")
        e(f"    v_and_b32 v{vBB+2}, v{vPk}, v{vM+2}")
        e(f"    v_and_b32 v{vBB+3}, v{vPk}, v{vM+3}")
        e(f"    v_and_b32_dpp v{vBA+2}, v{vPk}, v{vM+2} row_shr:4 row_mask:0xf bank_mask:0xf bound_ctrl:0")
        e(f"    v_and_b32_dpp v{vBA+3}, v{vPk}, v{vM+3} row_shr:4 row_mask:0xf bank_mask:0xf bound_ctrl:0")
        e(f"    v_and_b32_dpp v{vBB+0}, v{vPk}, v{vM+0} row_shl:4 row_mask:0xf bank_mask:0xf bound_ctrl:0")
        e(f"    v_and_b32_dpp v{vBB+1}, v{vPk}, v{vM+1} row_shl:4 row_mask:0xf bank_mask:0xf bound_ctrl:0")
        e(f"    s_waitcnt vmcnt({wv})")
        e(f"    v_mfma_f32_16x16x32_bf16 {r4(vAL)}, {V(s,0)}, {r4(vBA)}, {r4(vAL)}")
        e(f"    v_mfma_f32_16x16x32_bf16 {r4(vAH)}, {V(s,2)}, {r4(vBA)}, {r4(vAH)}")
        e(f"    v_mfma_f32_16x16x32_bf16 {r4(vAL)}, {V(s,1)}, {r4(vBB)}, {r4(vAL)}")
        e(f"    v_mfma_f32_16x16x32_bf16 {r4(vAH)}, {V(s,3)}, {r4(vBB)}, {r4(vAH)}")
        if not final:
            loadV(s)

    inloop[0] = True
    e(".p2align 6")
    e("L_loop:")
    if stamp == 2:
        e(f"    s_memrealtime s[{sT1}:{sT1+1}]")
    for s in range(D):
        slot(e, s, False)
    if stamp == 2:
        e("    s_waitcnt lgkmcnt(0)")
        e(f"    v_writelane_b32 v{vSt}, s{sT1}, m0")
        e(f"    s_add_u32 m0, m0, 1")
        e(f"    s_min_u32 m0, m0, 63")
    e(f"    s_cmp_eq_u32 s{sLast}, 0")
    e(f"    s_cbranch_scc1 L_loop")

    cold = []
    e = cold.append
    nst = [0]

    def T():
        if stamp == 4:
            e(f"    s_memrealtime s[{sE+2*nst[0]}:{sE+2*nst[0]+1}]")
            nst[0] += 1

    for s in range(D):
        e(f"    s_cmp_eq_u32 s{sM}, {s}")
        e(f"    s_cbranch_scc1 L_done")
        slot(e, s, True)
    e("    s_nop 1")
    def loadrecs():
        for i in range(1, S):
            b = vRec + 4 * i
            e(f"    buffer_load_dwordx4 v[{b}:{b+3}], v{vVoff}, s[{sWS}:{sWS+3}], s{sRo+i} offen {rfl}")
    e("L_done:")
    if stamp:
        e(f"    s_memrealtime s[{sT1}:{sT1+1}]")
    if lfirst:
        loadrecs()
    e(f"    v_add_f32_dpp v{vX}, v{vL}, v{vL} row_ror:4 row_mask:0xf bank_mask:0xf")
    e(f"    s_add_u32 s{sTmp2}, s{sRec}, s{sOwn}")
    e(f"    v_mov_b32 v{vBA+2}, v{vNeg}")
    e(f"    v_add_f32_dpp v{vX}, v{vX}, v{vX} row_ror:8 row_mask:0xf bank_mask:0xf")
    e(f"    v_mov_b32 v{vTl}, 1")
    e("    s_nop 0")
    for r in range(4):
        e(f"    v_readlane_b32 s{sR0+r}, v{vX}, {16*r}")
    e(f"    v_add_f32_dpp v{vBA+0}, v{vAH+0}, v{vAL+0} row_shl:8 row_mask:0xf bank_mask:0x3")
    e(f"    v_add_f32_dpp v{vBA+1}, v{vAH+1}, v{vAL+1} row_shl:8 row_mask:0xf bank_mask:0x3")
    e(f"    v_add_f32_dpp v{vBA+0}, v{vAL+2}, v{vAH+2} row_shr:8 row_mask:0xf bank_mask:0xc")
    e(f"    v_add_f32_dpp v{vBA+1}, v{vAL+3}, v{vAH+3} row_shr:8 row_mask:0xf bank_mask:0xc")
    e(f"    v_mov_b32 v{vL}, s{sR0}")
    e(f"    v_add_f32 v{vL}, s{sR0+1}, v{vL}")
    e(f"    v_mov_b32 v{vX}, s{sR0+2}")
    e(f"    v_add_f32 v{vX}, s{sR0+3}, v{vX}")
    e(f"    v_add_f32 v{vL}, v{vL}, v{vX}")
    e(f"    v_or_b32 v{vBA+3}, 1, v{vL}")
    T()
    e(f"    buffer_store_dwordx4 {r4(vBA)}, v{vVoff}, s[{sWS}:{sWS+3}], s{sTmp2} offen {wfl}")
    if not lfirst:
        loadrecs()
    e(f"    s_mov_b64 exec, 1")
    e(f"    buffer_atomic_add v{vTl}, off, s[{sCT}:{sCT+3}], s{sCnt} offset:4 {afl}")
    e(f"    s_mov_b64 exec, -1")
    nyoung = 1 + lfirst
    if stamp:
        e(f"    s_getreg_b32 s{sTmp2}, hwreg(HW_REG_XCC_ID)")
        e(f"    s_lshl_b32 s{sTmp}, s2, 4")
        e(f"    s_add_u32 s{sTmp}, s{sTmp}, {SBASE}")
        e("    s_waitcnt lgkmcnt(0)")
        e(f"    v_mov_b32 v{vBB}, s{sT0}")
        e(f"    v_mov_b32 v{vBB+1}, s{sT1}")
        e(f"    v_mov_b32 v{vBB+2}, s{sTmp2}")
        e(f"    v_mov_b32 v{vBB+3}, m0")
        e(f"    s_mov_b64 exec, 1")
        e(f"    buffer_store_dwordx4 {r4(vBB)}, off, s[{sWS}:{sWS+3}], s{sTmp}")
        e(f"    s_mov_b64 exec, -1")
        nyoung += 1
        if stamp == 2:
            e(f"    s_lshl_b32 s{sTmp}, s2, 8")
            e(f"    s_add_u32 s{sTmp}, s{sTmp}, {SBASE + nwg*16}")
            e(f"    v_lshlrev_b32 v{vT1}, 2, v0")
            e(f"    buffer_store_dword v{vSt}, v{vT1}, s[{sWS}:{sWS+3}], s{sTmp} offen")
            nyoung += 1
    e(f"    s_waitcnt vmcnt({nyoung})")
    e("L_chk:")
    T()
    R = [vBA] + [vRec + 4 * i for i in range(1, S)]
    e(f"    v_and_b32 v{vX}, v{R[1]+3}, v{R[2]+3}")
    e(f"    v_and_b32 v{vT}, v{R[3]+3}, v{R[4]+3}")
    e(f"    v_and_b32 v{vX}, v{vX}, v{R[5]+3}")
    e(f"    v_and_b32 v{vT}, v{vT}, v{R[6]+3}")
    e(f"    v_and_b32 v{vX}, v{vX}, v{R[7]+3}")
    e(f"    v_and_b32 v{vX}, v{vX}, v{vT}")
    e(f"    v_and_b32 v{vX}, 1, v{vX}")
    e(f"    v_cmp_eq_u32 vcc, 0, v{vX}")
    if stamp == 4:
        e(f"    s_add_u32 m0, m0, 1")
    e(f"    s_cbranch_vccnz L_miss")
    e(f"    v_min3_f32 v{vT1}, v{R[0]+2}, v{R[1]+2}, v{R[2]+2}")
    e(f"    v_min3_f32 v{vT2}, v{R[3]+2}, v{R[4]+2}, v{R[5]+2}")
    e(f"    v_min3_f32 v{vT1}, v{vT1}, v{R[6]+2}, v{R[7]+2}")
    e(f"    v_min_f32 v{vT1}, v{vT1}, v{vT2}")
    for b in R:
        e(f"    v_sub_f32 v{b+2}, v{vT1}, v{b+2}")
    for b in R:
        e(f"    v_exp_f32 v{b+2}, v{b+2}")
    e(f"    v_mul_f32 v{vT}, v{R[0]+3}, v{R[0]+2}")
    e(f"    v_mul_f32 v{vP}, v{R[1]+3}, v{R[1]+2}")
    for i, b in enumerate(R[2:]):
        e(f"    v_fmac_f32 v{vT if i % 2 == 0 else vP}, v{b+3}, v{b+2}")
    e(f"    v_add_f32 v{vT}, v{vT}, v{vP}")
    e(f"    v_mul_f32 v{vT1}, v{R[0]}, v{R[0]+2}")
    e(f"    v_rcp_f32 v{vT}, v{vT}")
    e(f"    v_mul_f32 v{vT2}, v{R[0]+1}, v{R[0]+2}")
    for b in R[1:]:
        e(f"    v_fmac_f32 v{vT1}, v{b}, v{b+2}")
        e(f"    v_fmac_f32 v{vT2}, v{b+1}, v{b+2}")
    e(f"    v_mul_f32 v{vT1}, v{vT1}, v{vT}")
    e(f"    v_mul_f32 v{vT2}, v{vT2}, v{vT}")
    e(f"    v_cvt_pk_bf16_f32 v{vT1}, v{vT1}, v{vT2}")
    T()
    e(f"    buffer_store_short v{vT1}, v{vOo}, s[{sOUT}:{sOUT+3}], 0 offen {ofl}")
    e(f"    buffer_store_short_d16_hi v{vT1}, v{vOo}, s[{sOUT}:{sOUT+3}], 0 offen offset:16 {ofl}")
    if stamp:
        e("    s_waitcnt vmcnt(0)")
        T()
        e(f"    s_memrealtime s[{sT0}:{sT0+1}]")
        e(f"    s_lshl_b32 s{sTmp}, s{sHead}, 2")
        e(f"    s_add_u32 s{sTmp}, s{sTmp}, {SBASE + nwg*(16+256)}")
        e("    s_waitcnt lgkmcnt(0)")
        e(f"    v_mov_b32 v{vBA}, s{sT0}")
        e(f"    s_mov_b64 exec, 1")
        e(f"    buffer_store_dword v{vBA}, off, s[{sWS}:{sWS+3}], s{sTmp}")
        if stamp == 4:
            e(f"    s_mov_b64 exec, -1")
            e(f"    v_mov_b32 v{vSt}, 0")
            e(f"    v_writelane_b32 v{vSt}, s{sT1}, 0")
            for i in range(nst[0]):
                e(f"    v_writelane_b32 v{vSt}, s{sE+2*i}, {i+1}")
            e(f"    v_writelane_b32 v{vSt}, m0, 15")
            e(f"    s_lshl_b32 s{sTmp}, s{sHead}, 8")
            e(f"    s_add_u32 s{sTmp}, s{sTmp}, {SBASE + nwg*16}")
            e(f"    v_lshlrev_b32 v{vT1}, 2, v0")
            e(f"    buffer_store_dword v{vSt}, v{vT1}, s[{sWS}:{sWS+3}], s{sTmp} offen")
    e("L_end:")
    e("    s_endpgm")
    e("L_miss:")
    e("    s_waitcnt vmcnt(0)")
    e(f"    v_readfirstlane_b32 s{sTmp2}, v{vTl}")
    e(f"    s_cmp_lg_u32 s{sTmp2}, {S-1}")
    e(f"    s_cbranch_scc1 L_end")
    loadrecs()
    e("    s_waitcnt vmcnt(0)")
    e("    s_branch L_chk")
    e("L_ctl:")
    e(f"    s_cmp_lg_u32 s{sRem}, 0")
    e(f"    s_cbranch_scc1 L_c1")
    e(f"    v_readfirstlane_b32 s{sTmp}, v{vAt}")
    e(f"    s_mov_b32 s{sStr}, 1")
    e(f"    s_cmp_ge_u32 s{sTmp}, {C2}")
    e(f"    s_cbranch_scc1 L_tail")
    e(f"    s_add_u32 s{sN}, s{sTmp}, {I0*W + c1*a1 - c1 - 1}")
    e(f"    s_mov_b32 s{sRem}, 1")
    if c1:
        e(f"    s_mul_i32 s{sTmp2}, s{sTmp}, {a1}")
        e(f"    s_add_u32 s{sTmp2}, s{sTmp2}, {I0*W - 1}")
        e(f"    s_cmp_lt_u32 s{sTmp}, {c1}")
        e(f"    s_cselect_b32 s{sN}, s{sTmp2}, s{sN}")
        e(f"    s_cselect_b32 s{sRem}, {a1}, 1")
    e("L_c1:")
    e(f"    s_add_u32 s{sN}, s{sN}, s{sStr}")
    e(f"    s_cmp_lg_u32 s{sRem}, 1")
    e(f"    s_cbranch_scc1 L_c2")
    e(f"    v_mov_b32 v{vAt}, 1")
    e(f"    s_mov_b64 exec, 1")
    e(f"    buffer_atomic_add v{vAt}, off, s[{sCT}:{sCT+3}], s{sCnt} {afl}")
    e(f"    s_mov_b64 exec, -1")
    e(f"    s_branch L_ret")
    e("L_tail:")
    e(f"    s_sub_u32 s{sTmp}, s{sTmp}, {C2}")
    e(f"    s_lshl_b32 s{sTmp}, s{sTmp}, 3")
    e(f"    s_lshr_b64 s[{sTW}:{sTW+1}], s[{sTW}:{sTW+1}], s{sTmp}")
    e(f"    s_and_b32 s{sN}, s{sTW}, 7")
    e(f"    s_add_u32 s{sN}, s{sN}, {T0}")
    e(f"    s_bfe_u32 s{sS0}, s{sTW}, 0x20003")
    e(f"    s_lshl_b32 s{sS0}, s{sS0}, {JB[4]}")
    e(f"    s_bfe_u32 s{sM}, s{sTW}, 0x30005")
    e(f"    s_mov_b32 s{sLast}, 1")
    e(f"    s_branch L_ret")
    e("L_c2:")
    e(f"    s_cmp_lg_u32 s{sRem}, 2")
    e(f"    s_cbranch_scc1 L_c3")
    e(f"    v_readfirstlane_b32 s{sTmp}, v{vFl}")
    e(f"    s_cmp_eq_u32 s{sTmp}, 0")
    e(f"    s_cbranch_scc1 L_spin")
    e(f"    s_branch L_ret")
    e("L_c3:")
    e(f"    s_cmp_lg_u32 s{sRem}, 3")
    e(f"    s_cbranch_scc1 L_c4")
    e(f"    s_cmp_eq_u32 s{sStr}, 1")
    e(f"    s_cbranch_scc1 L_ret")
    e(f"    s_mov_b64 exec, 1")
    e(f"    buffer_load_dword v{vFl}, off, s[{sDBG}:{sDBG+3}], s{sFl} sc0 sc1")
    e(f"    s_mov_b64 exec, -1")
    e(f"    s_branch L_ret")
    e("L_c4:")
    e(f"    s_cmp_eq_u32 s{sEvt}, 3")
    e(f"    s_cbranch_scc1 L_ret")
    e(f"    s_mov_b32 s{sEvt}, 3")
    if warm:
        e(f"    s_mov_b64 exec, 0")
        e(f"    s_branch L_hop0")
        e("L_hopend:")
        e(f"    s_mov_b64 exec, -1")
    e(f"    s_cmp_lg_u32 s{sSplit}, 0")
    e(f"    s_cbranch_scc1 L_ret")
    e(f"    v_mov_b32 v{vTl}, 1")
    e(f"    s_mov_b64 exec, 1")
    e(f"    buffer_store_dword v{vTl}, off, s[{sDBG}:{sDBG+3}], s{sFl} sc0 sc1")
    e(f"    s_mov_b64 exec, -1")
    e(f"    s_branch L_ret")
    e("L_spin:")
    e(f"    s_mov_b64 exec, 1")
    e(f"    buffer_load_dword v{vFl}, off, s[{sDBG}:{sDBG+3}], s{sFl} sc0 sc1")
    e(f"    s_mov_b64 exec, -1")
    e("    s_waitcnt vmcnt(0)")
    e(f"    v_readfirstlane_b32 s{sTmp}, v{vFl}")
    e(f"    s_cmp_eq_u32 s{sTmp}, 0")
    e(f"    s_cbranch_scc1 L_spin")
    e(f"    s_branch L_ret")
    ncold_warm = len(cold)
    for s in rares:
        e(f"L_rare_{s}:")
        e("    s_nop 1")
        e(f"    v_max_f32_dpp v{vX}, v{vT}, v{vT} row_ror:4 row_mask:0xf bank_mask:0xf")
        e("    s_nop 1")
        e(f"    v_max_f32_dpp v{vX}, v{vX}, v{vX} row_ror:8 row_mask:0xf bank_mask:0xf")
        e("    s_nop 1")
        for r in range(4):
            e(f"    v_readlane_b32 s{sR0+r}, v{vX}, {16*r}")
        e("    s_nop 1")
        e(f"    v_mov_b32 v{vX}, s{sR0}")
        for r in range(1, 4):
            e(f"    v_max_f32 v{vX}, s{sR0+r}, v{vX}")
        e(f"    v_sub_f32 v{vT}, v{vT}, v{vX}")
        e(f"    v_sub_f32 v{vNeg}, v{vNeg}, v{vX}")
        e(f"    v_max_f32 v{vX}, 0, v{vX}")
        e(f"    v_exp_f32 v{vX}, -v{vX}")
        e(f"    s_mov_b32 s{sThr}, 0")
        e(f"    v_mul_f32 v{vL}, v{vL}, v{vX}")
        for r in range(4):
            e(f"    v_mul_f32 v{vAL+r}, v{vAL+r}, v{vX}")
            e(f"    v_mul_f32 v{vAH+r}, v{vAH+r}, v{vX}")
        e(f"    s_branch L_back_{s}")

    e = L.append
    if warm:
        def size(ins):
            t = ins.strip()
            if not t or t.endswith(":") or t.startswith(";"):
                return 0
            op = t.split()[0]
            if op.startswith("buffer_") or op.startswith("s_memrealtime") or "_dpp" in op or op in ("v_readlane_b32", "v_writelane_b32", "v_min3_f32", "v_cvt_pk_bf16_f32"):
                return 8
            import re
            lits = re.findall(r"(?<![\w\[:])(0x[0-9a-f]+|\d+)(?![\w\]:])", t.split(";")[0].split(None, 1)[1] if " " in t.split(";")[0].strip() else "")
            if op.startswith("s_waitcnt") or op.startswith("s_nop") or op.startswith("s_cbranch") or op.startswith("s_branch"):
                return 4
            if any(int(x, 0) > 64 for x in lits):
                return 8
            return 4
        nh = 0
        acc = hop
        out = []
        for i, ins in enumerate(cold[:ncold_warm]):
            if acc >= hop - 4 and not ins.endswith(":") and "L_hop" not in ins and "exec" not in ins and not (out and "exec, 0" in out[-1]):
                out.append(f"L_hop{nh}:")
                out.append(f"    s_cbranch_execz L_hop{nh+1}")
                nh += 1
                acc = 4
            out.append(ins)
            acc += size(ins)
        out.append(f"L_hop{nh}:")
        out.append(f"    s_branch L_hopend")
        cold = out + cold[ncold_warm:]
    L.extend(cold)

    ac = (nvgpr + 3) // 4 * 4
    e('.section .rodata,"a"')
    e(".p2align 6")
    e(f".amdhsa_kernel {NAME}_kernel")
    e(f"  .amdhsa_next_free_vgpr {nvgpr}")
    e(f"  .amdhsa_next_free_sgpr 102")
    e(f"  .amdhsa_accum_offset {ac}")
    e("  .amdhsa_group_segment_fixed_size 0")
    e("  .amdhsa_kernarg_size 48")
    e("  .amdhsa_user_sgpr_count 2")
    e("  .amdhsa_user_sgpr_kernarg_segment_ptr 1")
    e("  .amdhsa_system_sgpr_workgroup_id_x 1")
    e(".end_amdhsa_kernel")
    return "\n".join(L) + "\n"


if __name__ == "__main__":
    out = sys.argv[1]
    kw = {}
    for a in sys.argv[2:]:
        k, v = a.split("=", 1)
        try:
            v = int(v)
        except ValueError:
            v = v.replace("+", " ")
        kw[k] = v
    open(out, "w").write(gen(**kw))
```

```python
import sys
import math
import struct

NAME = "standalone__gqa_softmax__decode"

HEADER = """; Kernarg layout for this problem (48 bytes, ptrs only, base s[0:1]):
"""


def lg(x):
    r = int(math.log2(x))
    assert 1 << r == x, x
    return r


def gen(i0=52, kfl="nt", vfl="nt", stamp=0, cstride=4352, rot=72, afl="sc0", jb="8.12.13.15.10.11", nb="",
        epi=1, warm=0, hop=64, evt=4, evtspread=1, rstride=8192, tail="4.4.3.3.2.2.1.1", a1=1, c1=0, ofl="", fast=0, lfirst=0, rfl="sc1", wfl="sc1"):
    nwg, wpw, D = 256, 1, 4
    S = W = 8
    NC = 2048 // D
    I0 = i0
    RD = NC - I0 * W
    assert I0 >= evt + evtspread + 5 and RD > 0
    nsb = lg(D)
    TL = [int(x) for x in str(tail).split(".")]
    assert len(TL) == 8 and all(0 <= x <= 4 for x in TL) and sum(TL) % 4 == 0
    bins = []
    place = {}
    for j in sorted(range(8), key=lambda j: -TL[j]):
        if TL[j] == 0:
            place[j] = (0, 0)
            continue
        for b in range(len(bins)):
            if bins[b] + TL[j] <= 4:
                place[j] = (b, bins[b]); bins[b] += TL[j]
                break
        else:
            place[j] = (len(bins), 0); bins.append(TL[j])
    assert all(b == 4 for b in bins), bins
    assert all((place[j][1] & t) == 0 for j in range(8) for t in range(TL[j]))
    NT = len(bins)
    TAILW = sum(((place[j][0] | place[j][1] << 3 | TL[j] << 5) << (8 * j)) for j in range(8))
    T0 = NC - NT
    n1 = RD - NT - c1 * a1
    assert n1 >= 0
    C2 = c1 + n1
    DM = [sum(1 << int(t) for t in x.split("x")) for x in str(jb).split(".")]
    assert len(DM) == 6 and all(256 <= m < (1 << 23) and m % 256 == 0 for m in DM)
    basis = []

    def reduce(v):
        for bb in basis:
            v = min(v, v ^ bb)
        return v

    def add(v):
        r = reduce(v)
        if r:
            basis.append(r)
            basis.sort(reverse=True)
        return bool(r)
    for m in DM:
        assert add(m), "dependent directions"
    NB = []
    pre = [int(x) for x in str(nb).split(".")] if nb else []
    for b in pre + list(range(8, 23)):
        if add(1 << b):
            NB.append(b)
        else:
            assert b not in pre or b in NB
    assert 1 << len(NB) == NC
    runs = []
    for i, b in enumerate(NB):
        if runs and runs[-1][1] + runs[-1][2] == b:
            runs[-1][2] += 1
        else:
            runs.append([i, b, 1])

    def sc(x, ms):
        r = 0
        for i, m in enumerate(ms):
            if (x >> i) & 1:
                r ^= m
        return r
    L = []
    e = L.append

    vOo, vVoff = 1, 2
    vT1, vT2, vT, vP, vPk, vL, vNeg, vC, vX = 3, 4, 5, 6, 7, 8, 9, 10, 11
    vM = 12
    vQ = 16
    vS = 32
    vBA = 36
    vBB = 40
    vAL = 44
    vAH = 48
    vSt = 52
    vAt = 53
    vTl = 54
    vFl = 55
    vKo = [56, 57, 58, 59]
    vVo = [60, 61, 62, 63]
    vRing = 64
    vRec = vRing + 32 * D - 4
    vKa = [vRec + 32 + i for i in range(4)]
    vVa = [vRec + 36 + i for i in range(4)]
    nvgpr = vRec + 40

    def K(s, c):
        b = vRing + 32 * s + 4 * c
        return f"v[{b}:{b+3}]"

    def V(s, c):
        b = vRing + 32 * s + 16 + 4 * c
        return f"v[{b}:{b+3}]"

    def r4(b):
        return f"v[{b}:{b+3}]"

    sK, sV, sQ, sWS, sOUT, sDBG = 16, 20, 24, 28, 32, 36
    sHead, sSplit, sRem, sOff, sN, sThr, sEvt, sTmp, sTmp2, sCnt = 40, 41, 42, 43, 44, 45, 46, 47, 48, 49
    sR0 = 50
    sStr, sSz = 54, 55
    sT0 = 56
    sT1 = 58
    sCT = 60
    sFl = 64
    sRot = 65
    sRec = 66
    sBase = 67
    sN2 = 68
    sOwn = 69
    sM, sS0 = 70, 71
    sE = 72
    sLast = 90
    sRo = 93
    sTW = 88
    CBASE = 1 << 20
    RECS = 32 * rstride
    STB = nwg * 1024 if rstride == 8192 else None
    SBASE = 2 << 20

    e(HEADER.rstrip())
    e(f"; @launch grid=({nwg},1,1) block=(64,1,1) lds=0")
    e('.amdgcn_target "amdgcn-amd-amdhsa--gfx950"')
    e(".text")
    e(f".globl {NAME}_kernel")
    e(".p2align 8")
    e(f".type {NAME}_kernel,@function")
    e(f"{NAME}_kernel:")
    e(f"    s_cmp_ge_u32 s2, {nwg}")
    e(f"    s_cbranch_scc1 L_end")
    e("    s_load_dwordx8 s[4:11], s[0:1], 0")
    e("    s_load_dwordx4 s[12:15], s[0:1], 32")
    if stamp:
        e(f"    s_memrealtime s[{sT0}:{sT0+1}]")
    e(f"    s_lshr_b32 s{sHead}, s2, {lg(S)}")
    e(f"    s_and_b32 s{sSplit}, s2, {S-1}")
    e(f"    v_and_b32 v{vT1}, 3, v0              ; b")
    e(f"    v_lshlrev_b32 v{vT1}, 4, v{vT1}       ; b*16")
    e(f"    v_lshrrev_b32 v{vT2}, 4, v0          ; g")
    e(f"    v_lshl_add_u32 v{vT1}, v{vT2}, 6, v{vT1}")

    def keyoff(dst, base, lo):
        e(f"    v_bfe_u32 v{vX}, v0, {lo}, 1")
        e(f"    v_mul_u32_u24 v{vX}, 0x{DM[0]:x}, v{vX}")
        e(f"    v_xor_b32 v{dst}, v{vX}, v{base}")
        e(f"    v_bfe_u32 v{vX}, v0, {lo+1}, 1")
        e(f"    v_mul_u32_u24 v{vX}, 0x{DM[1]:x}, v{vX}")
        e(f"    v_xor_b32 v{dst}, v{vX}, v{dst}")
    keyoff(vKo[0], vT1, 2)
    e(f"    v_and_b32 v{vT}, 15, v0")
    e(f"    v_lshlrev_b32 v{vT}, 4, v{vT}")
    keyoff(vVo[0], vT, 4)
    for c in range(1, 4):
        e(f"    v_xor_b32 v{vKo[c]}, {sc(c, DM[2:4])}, v{vKo[0]}")
        e(f"    v_xor_b32 v{vVo[c]}, {sc(c, DM[2:4])}, v{vVo[0]}")
    e(f"    s_mov_b32 s{sN}, s{sSplit}")

    def base(guard):
        n = 0
        src = sN
        if rot:
            e(f"    s_add_u32 s{sN2}, s{sN}, s{sRot}")
            src = sN2
            n += 1
        for i, (sb, db, ln) in enumerate(runs):
            dst = sBase if i == 0 else sTmp
            e(f"    s_bfe_u32 s{dst}, s{src}, 0x{(ln << 16) | sb:x}")
            e(f"    s_lshl_b32 s{dst}, s{dst}, {db}")
            n += 2
            if i:
                e(f"    s_or_b32 s{sBase}, s{sBase}, s{sTmp}")
                n += 1
        if guard:
            e(f"    s_xor_b32 s{sBase}, s{sBase}, s{sS0}")
            e(f"    s_cmp_lt_u32 0, s{sM}")
            e(f"    s_cselect_b32 s{sOff}, s{sBase}, 0x800000")
            n += 3
        return n
    if rot:
        e(f"    s_mul_i32 s{sRot}, s{sHead}, {rot}")
    base(False)
    e(f"    s_lshl_b32 s{sTmp}, s{sHead}, 23")
    e(f"    s_lshl_b32 s{sTmp2}, s{sHead}, 8      ; head*256")
    e(f"    s_mov_b32 s{sK+2}, 0x800000")
    e(f"    s_mov_b32 s{sK+3}, 0x00020000")
    e(f"    s_mov_b32 s{sV+2}, 0x800000")
    e(f"    s_mov_b32 s{sV+3}, 0x00020000")
    e(f"    s_mov_b32 s{sQ+2}, 0x2000")
    e(f"    s_mov_b32 s{sQ+3}, 0x00020000")
    e("    s_waitcnt lgkmcnt(0)")
    e(f"    s_mov_b32 s{sQ}, s4")
    e(f"    s_mov_b32 s{sQ+1}, s5")
    e(f"    s_add_u32 s{sK}, s6, s{sTmp}")
    e(f"    s_addc_u32 s{sK+1}, s7, 0")
    e(f"    buffer_load_dwordx4 {r4(vBA)}, v{vT1}, s[{sQ}:{sQ+3}], s{sTmp2} offen")

    inloop = [False]

    def soff(s):
        return sBase if (s == 0 and not inloop[0]) else sOff

    def setoff(s):
        if s:
            e(f"    s_xor_b32 s{sOff}, s{sBase}, {sc(s, DM[4:])}")
            if inloop[0]:
                e(f"    s_cmp_lt_u32 {s}, s{sM}")
                e(f"    s_cselect_b32 s{sOff}, s{sOff}, 0x800000")
                return 3
            return 1
        return 0

    def loadK(s):
        for c in range(4):
            e(f"    v_xor_b32 v{vKa[c]}, s{soff(s)}, v{vKo[c]}")
        for c in range(4):
            e(f"    buffer_load_dwordx4 {K(s,c)}, v{vKa[c]}, s[{sK}:{sK+3}], 0 offen {kfl}".rstrip())

    def loadV(s):
        for c in range(4):
            e(f"    v_xor_b32 v{vVa[c]}, s{soff(s)}, v{vVo[c]}")
        for c in range(4):
            e(f"    buffer_load_dwordx4 {V(s,c)}, v{vVa[c]}, s[{sV}:{sV+3}], 0 offen {vfl}".rstrip())

    for j in range(D):
        setoff(j)
        loadK(j)
        if j == 0:
            e(f"    s_add_u32 s{sV}, s8, s{sTmp}")
            e(f"    s_addc_u32 s{sV+1}, s9, 0")
        loadV(j)
    e(f"    s_add_u32 s{sCT}, s14, {CBASE}")
    e(f"    s_addc_u32 s{sCT+1}, s15, 0")
    e(f"    s_mov_b32 s{sCT+2}, {32*cstride}")
    e(f"    s_mov_b32 s{sCT+3}, 0x00020000")
    e(f"    s_mul_i32 s{sCnt}, s{sHead}, {cstride}")
    e(f"    s_mov_b32 s{sWS}, s14")
    e(f"    s_mov_b32 s{sWS+1}, s15")
    e(f"    s_mov_b32 s{sWS+2}, {SBASE + (1 << 20) if stamp else RECS}")
    e(f"    s_mov_b32 s{sWS+3}, 0x00020000")
    e(f"    s_add_u32 s{sOUT}, s10, s{sTmp2}")
    e(f"    s_addc_u32 s{sOUT+1}, s11, 0")
    e(f"    s_mov_b32 s{sOUT+2}, 256")
    e(f"    s_mov_b32 s{sOUT+3}, 0x00020000")
    e(f"    s_mov_b32 s{sDBG}, s12")
    e(f"    s_mov_b32 s{sDBG+1}, s13")
    e(f"    s_mov_b32 s{sDBG+2}, 256")
    e(f"    s_mov_b32 s{sDBG+3}, 0x00020000")
    e(f"    s_lshl_b32 s{sFl}, s{sHead}, 2")
    e(f"    s_mul_i32 s{sRec}, s{sHead}, {rstride}")
    e(f"    s_lshl_b32 s{sOwn}, s{sSplit}, 10")
    for i in range(1, S):
        e(f"    s_add_u32 s{sRo+i}, s{sOwn}, {i*1024}")
        e(f"    s_and_b32 s{sRo+i}, s{sRo+i}, {S*1024-1}")
        e(f"    s_add_u32 s{sRo+i}, s{sRo+i}, s{sRec}")
    e(f"    v_lshlrev_b32 v{vVoff}, 4, v0")
    e(f"    v_and_b32 v{vOo}, 7, v0")
    e(f"    v_bfe_u32 v{vX}, v0, 3, 3            ; lane>>3 = g*2 + (j>=8)")
    e(f"    v_lshl_add_u32 v{vOo}, v{vX}, 4, v{vOo}")
    e(f"    v_lshlrev_b32 v{vOo}, 1, v{vOo}")
    e(f"    v_mov_b32 v{vAt}, 0")
    e(f"    v_mov_b32 v{vFl}, 0")
    for r in range(4):
        e(f"    v_mov_b32 v{vAL+r}, 0")
        e(f"    v_mov_b32 v{vAH+r}, 0")
    e(f"    s_cmp_lg_u32 s{sSplit}, 0")
    e(f"    s_cbranch_scc1 L_noinit")
    e(f"    v_lshlrev_b32 v{vTl}, 2, v0")
    e(f"    s_mov_b64 exec, 3")
    e(f"    buffer_store_dword v{vAt}, v{vTl}, s[{sCT}:{sCT+3}], s{sCnt} offen sc0 sc1")
    e(f"    s_mov_b64 exec, -1")
    if epi:
        e(f"    s_add_u32 s{sTmp}, s{sRec}, 4096")
        for i in range(S):
            o = f" offset:{(i%4)*1024}" if i % 4 else ""
            e(f"    buffer_store_dwordx4 {r4(vAL)}, v{vVoff}, s[{sWS}:{sWS+3}], s{sRec if i < 4 else sTmp} offen{o} sc1")
    e("L_noinit:")
    e(f"    s_mov_b32 s{sRem}, {I0-1}")
    e(f"    s_mov_b32 s{sStr}, {W}")
    e(f"    s_mov_b32 s{sM}, 4")
    e(f"    s_mov_b32 s{sS0}, 0")
    e(f"    s_mov_b32 s{sLast}, 0")
    e(f"    s_mov_b32 s{sTW}, 0x{TAILW & 0xffffffff:x}")
    e(f"    s_mov_b32 s{sTW+1}, 0x{TAILW >> 32:x}")
    if evtspread > 1:
        e(f"    s_and_b32 s{sEvt}, s{sHead}, {evtspread-1}")
        e(f"    s_sub_u32 s{sEvt}, {I0-1-evt}, s{sEvt}")
    else:
        e(f"    s_mov_b32 s{sEvt}, {I0-1-evt}")
    if not warm:
        e(f"    s_cmp_eq_u32 s{sSplit}, 0")
        e(f"    s_cselect_b32 s{sEvt}, s{sEvt}, 3")
    if stamp >= 2:
        e(f"    s_mov_b32 m0, 0")
        e(f"    v_mov_b32 v{vSt}, 0")
    e(f"    s_mov_b32 s{sThr}, 0xff800000")
    e(f"    v_bfe_u32 v{vT2}, v0, 2, 2")
    e(f"    v_and_b32 v{vX}, 1, v0")
    e(f"    v_lshlrev_b32 v{vX}, 4, v{vX}")
    e(f"    v_mov_b32 v{vP}, 0xffff")
    e(f"    v_lshlrev_b32 v{vP}, v{vX}, v{vP}")
    e(f"    v_bfe_u32 v{vX}, v0, 1, 2            ; (lane&7)>>1")
    for r in range(4):
        e(f"    v_cmp_eq_u32 vcc, {r}, v{vX}")
        e(f"    s_nop 1")
        e(f"    v_cndmask_b32 v{vM+r}, 0, v{vP}, vcc")
    scale = (128 ** -0.5) * math.log2(math.e)
    cbits = struct.unpack("<I", struct.pack("<f", scale))[0]
    e(f"    v_mov_b32 v{vC}, 0x{cbits:08x}       ; D^-0.5 * log2(e)")
    e(f"    v_mov_b32 v{vL}, 0")
    e(f"    v_mov_b32 v{vNeg}, 0")
    e(f"    s_waitcnt vmcnt({8*D})")
    for c in range(4):
        e(f"    v_cmp_eq_u32 vcc, {c}, v{vT2}")
        e(f"    s_nop 1")
        for r in range(4):
            e(f"    v_cndmask_b32 v{vQ+4*c+r}, 0, v{vBA+r}, vcc")
    e("    s_nop 1")

    rares = []

    def slot(e, s, final):
        tag = f"f{s}" if final else f"{s}"
        wk = 8 * D - 4 - (8 * s if final else 0)
        wv = 8 * D - 4 - (8 * s + 4 if final else 0)
        e(f"    s_waitcnt vmcnt({wk})")
        nfill = 0
        e(f"    v_mfma_f32_16x16x32_bf16 {r4(vS)}, {K(s,0)}, {r4(vQ)}, 0")
        for c in range(1, 4):
            e(f"    v_mfma_f32_16x16x32_bf16 {r4(vS)}, {K(s,c)}, {r4(vQ+4*c)}, {r4(vS)}")
        if not final:
            if s == 0:
                e(f"    s_cmp_le_u32 s{sRem}, s{sEvt}")
                e(f"    s_cbranch_scc1 L_ctl")
                e(f"    s_add_u32 s{sN}, s{sN}, s{sStr}")
                e("L_ret:")
                e(f"    s_sub_u32 s{sRem}, s{sRem}, 1")
                nfill += 4
                nfill += base(True)
            else:
                nfill += setoff(s)
            loadK(s)
            nfill += 4
        e(f"    v_mov_b32 v{vT1}, v{vNeg}")
        nfill += 1
        pad = max(8 - nfill, 2)
        e(f"    s_nop {pad-1}")
        e(f"    v_fmac_f32_dpp v{vT1}, v{vS+0}, v{vC} quad_perm:[0,0,0,0] row_mask:0xf bank_mask:0xf")
        e(f"    v_mul_f32_dpp v{vT2}, v{vS+1}, v{vC} quad_perm:[1,1,1,1] row_mask:0xf bank_mask:0xf")
        e(f"    s_nop 0")
        e(f"    v_fmac_f32_dpp v{vT1}, v{vS+2}, v{vC} quad_perm:[2,2,2,2] row_mask:0xf bank_mask:0xf")
        e(f"    v_fmac_f32_dpp v{vT2}, v{vS+3}, v{vC} quad_perm:[3,3,3,3] row_mask:0xf bank_mask:0xf")
        e(f"    v_add_f32 v{vT}, v{vT1}, v{vT2}")
        e(f"    v_cmp_lt_f32 vcc, s{sThr}, v{vT}")
        e(f"    s_cbranch_vccnz L_rare_{tag}")
        e(f"L_back_{tag}:")
        rares.append(tag)
        e(f"    v_exp_f32 v{vP}, v{vT}")
        e(f"    s_nop 0")
        e(f"    v_cvt_pk_bf16_f32 v{vPk}, v{vP}, v{vP}")
        e(f"    v_add_f32 v{vL}, v{vL}, v{vP}")
        e(f"    v_and_b32 v{vBA+0}, v{vPk}, v{vM+0}")
        e(f"    v_and_b32 v{vBA+1}, v{vPk}, v{vM+1}")
        e(f"    v_and_b32 v{vBB+2}, v{vPk}, v{vM+2}")
        e(f"    v_and_b32 v{vBB+3}, v{vPk}, v{vM+3}")
        e(f"    v_and_b32_dpp v{vBA+2}, v{vPk}, v{vM+2} row_shr:4 row_mask:0xf bank_mask:0xf bound_ctrl:0")
        e(f"    v_and_b32_dpp v{vBA+3}, v{vPk}, v{vM+3} row_shr:4 row_mask:0xf bank_mask:0xf bound_ctrl:0")
        e(f"    v_and_b32_dpp v{vBB+0}, v{vPk}, v{vM+0} row_shl:4 row_mask:0xf bank_mask:0xf bound_ctrl:0")
        e(f"    v_and_b32_dpp v{vBB+1}, v{vPk}, v{vM+1} row_shl:4 row_mask:0xf bank_mask:0xf bound_ctrl:0")
        e(f"    s_waitcnt vmcnt({wv})")
        e(f"    v_mfma_f32_16x16x32_bf16 {r4(vAL)}, {V(s,0)}, {r4(vBA)}, {r4(vAL)}")
        e(f"    v_mfma_f32_16x16x32_bf16 {r4(vAH)}, {V(s,2)}, {r4(vBA)}, {r4(vAH)}")
        e(f"    v_mfma_f32_16x16x32_bf16 {r4(vAL)}, {V(s,1)}, {r4(vBB)}, {r4(vAL)}")
        e(f"    v_mfma_f32_16x16x32_bf16 {r4(vAH)}, {V(s,3)}, {r4(vBB)}, {r4(vAH)}")
        if not final:
            loadV(s)

    inloop[0] = True
    e(".p2align 6")
    e("L_loop:")
    if stamp == 2:
        e(f"    s_memrealtime s[{sT1}:{sT1+1}]")
    for s in range(D):
        slot(e, s, False)
    if stamp == 2:
        e("    s_waitcnt lgkmcnt(0)")
        e(f"    v_writelane_b32 v{vSt}, s{sT1}, m0")
        e(f"    s_add_u32 m0, m0, 1")
        e(f"    s_min_u32 m0, m0, 63")
    e(f"    s_cmp_eq_u32 s{sLast}, 0")
    e(f"    s_cbranch_scc1 L_loop")

    cold = []
    e = cold.append
    nst = [0]

    def T():
        if stamp == 4:
            e(f"    s_memrealtime s[{sE+2*nst[0]}:{sE+2*nst[0]+1}]")
            nst[0] += 1

    for s in range(D):
        e(f"    s_cmp_eq_u32 s{sM}, {s}")
        e(f"    s_cbranch_scc1 L_done")
        slot(e, s, True)
    e("    s_nop 1")
    def loadrecs():
        for i in range(1, S):
            b = vRec + 4 * i
            e(f"    buffer_load_dwordx4 v[{b}:{b+3}], v{vVoff}, s[{sWS}:{sWS+3}], s{sRo+i} offen {rfl}")
    e("L_done:")
    if stamp:
        e(f"    s_memrealtime s[{sT1}:{sT1+1}]")
    if lfirst:
        loadrecs()
    e(f"    v_add_f32_dpp v{vX}, v{vL}, v{vL} row_ror:4 row_mask:0xf bank_mask:0xf")
    e(f"    s_add_u32 s{sTmp2}, s{sRec}, s{sOwn}")
    e(f"    v_mov_b32 v{vBA+2}, v{vNeg}")
    e(f"    v_add_f32_dpp v{vX}, v{vX}, v{vX} row_ror:8 row_mask:0xf bank_mask:0xf")
    e(f"    v_mov_b32 v{vTl}, 1")
    e("    s_nop 0")
    for r in range(4):
        e(f"    v_readlane_b32 s{sR0+r}, v{vX}, {16*r}")
    e(f"    v_add_f32_dpp v{vBA+0}, v{vAH+0}, v{vAL+0} row_shl:8 row_mask:0xf bank_mask:0x3")
    e(f"    v_add_f32_dpp v{vBA+1}, v{vAH+1}, v{vAL+1} row_shl:8 row_mask:0xf bank_mask:0x3")
    e(f"    v_add_f32_dpp v{vBA+0}, v{vAL+2}, v{vAH+2} row_shr:8 row_mask:0xf bank_mask:0xc")
    e(f"    v_add_f32_dpp v{vBA+1}, v{vAL+3}, v{vAH+3} row_shr:8 row_mask:0xf bank_mask:0xc")
    e(f"    v_mov_b32 v{vL}, s{sR0}")
    e(f"    v_add_f32 v{vL}, s{sR0+1}, v{vL}")
    e(f"    v_mov_b32 v{vX}, s{sR0+2}")
    e(f"    v_add_f32 v{vX}, s{sR0+3}, v{vX}")
    e(f"    v_add_f32 v{vL}, v{vL}, v{vX}")
    e(f"    v_or_b32 v{vBA+3}, 1, v{vL}")
    T()
    e(f"    buffer_store_dwordx4 {r4(vBA)}, v{vVoff}, s[{sWS}:{sWS+3}], s{sTmp2} offen {wfl}")
    if not lfirst:
        loadrecs()
    e(f"    s_mov_b64 exec, 1")
    e(f"    buffer_atomic_add v{vTl}, off, s[{sCT}:{sCT+3}], s{sCnt} offset:4 {afl}")
    e(f"    s_mov_b64 exec, -1")
    nyoung = 1 + lfirst
    if stamp:
        e(f"    s_getreg_b32 s{sTmp2}, hwreg(HW_REG_XCC_ID)")
        e(f"    s_lshl_b32 s{sTmp}, s2, 4")
        e(f"    s_add_u32 s{sTmp}, s{sTmp}, {SBASE}")
        e("    s_waitcnt lgkmcnt(0)")
        e(f"    v_mov_b32 v{vBB}, s{sT0}")
        e(f"    v_mov_b32 v{vBB+1}, s{sT1}")
        e(f"    v_mov_b32 v{vBB+2}, s{sTmp2}")
        e(f"    v_mov_b32 v{vBB+3}, m0")
        e(f"    s_mov_b64 exec, 1")
        e(f"    buffer_store_dwordx4 {r4(vBB)}, off, s[{sWS}:{sWS+3}], s{sTmp}")
        e(f"    s_mov_b64 exec, -1")
        nyoung += 1
        if stamp == 2:
            e(f"    s_lshl_b32 s{sTmp}, s2, 8")
            e(f"    s_add_u32 s{sTmp}, s{sTmp}, {SBASE + nwg*16}")
            e(f"    v_lshlrev_b32 v{vT1}, 2, v0")
            e(f"    buffer_store_dword v{vSt}, v{vT1}, s[{sWS}:{sWS+3}], s{sTmp} offen")
            nyoung += 1
    e(f"    s_waitcnt vmcnt({nyoung})")
    e("L_chk:")
    T()
    R = [vBA] + [vRec + 4 * i for i in range(1, S)]
    e(f"    v_and_b32 v{vX}, v{R[1]+3}, v{R[2]+3}")
    e(f"    v_and_b32 v{vT}, v{R[3]+3}, v{R[4]+3}")
    e(f"    v_and_b32 v{vX}, v{vX}, v{R[5]+3}")
    e(f"    v_and_b32 v{vT}, v{vT}, v{R[6]+3}")
    e(f"    v_and_b32 v{vX}, v{vX}, v{R[7]+3}")
    e(f"    v_and_b32 v{vX}, v{vX}, v{vT}")
    e(f"    v_and_b32 v{vX}, 1, v{vX}")
    e(f"    v_cmp_eq_u32 vcc, 0, v{vX}")
    if stamp == 4:
        e(f"    s_add_u32 m0, m0, 1")
    e(f"    s_cbranch_vccnz L_miss")
    e(f"    v_min3_f32 v{vT1}, v{R[0]+2}, v{R[1]+2}, v{R[2]+2}")
    e(f"    v_min3_f32 v{vT2}, v{R[3]+2}, v{R[4]+2}, v{R[5]+2}")
    e(f"    v_min3_f32 v{vT1}, v{vT1}, v{R[6]+2}, v{R[7]+2}")
    e(f"    v_min_f32 v{vT1}, v{vT1}, v{vT2}")
    for b in R:
        e(f"    v_sub_f32 v{b+2}, v{vT1}, v{b+2}")
    for b in R:
        e(f"    v_exp_f32 v{b+2}, v{b+2}")
    e(f"    v_mul_f32 v{vT}, v{R[0]+3}, v{R[0]+2}")
    e(f"    v_mul_f32 v{vP}, v{R[1]+3}, v{R[1]+2}")
    for i, b in enumerate(R[2:]):
        e(f"    v_fmac_f32 v{vT if i % 2 == 0 else vP}, v{b+3}, v{b+2}")
    e(f"    v_add_f32 v{vT}, v{vT}, v{vP}")
    e(f"    v_mul_f32 v{vT1}, v{R[0]}, v{R[0]+2}")
    e(f"    v_rcp_f32 v{vT}, v{vT}")
    e(f"    v_mul_f32 v{vT2}, v{R[0]+1}, v{R[0]+2}")
    for b in R[1:]:
        e(f"    v_fmac_f32 v{vT1}, v{b}, v{b+2}")
        e(f"    v_fmac_f32 v{vT2}, v{b+1}, v{b+2}")
    e(f"    v_mul_f32 v{vT1}, v{vT1}, v{vT}")
    e(f"    v_mul_f32 v{vT2}, v{vT2}, v{vT}")
    e(f"    v_cvt_pk_bf16_f32 v{vT1}, v{vT1}, v{vT2}")
    T()
    e(f"    buffer_store_short v{vT1}, v{vOo}, s[{sOUT}:{sOUT+3}], 0 offen {ofl}")
    e(f"    buffer_store_short_d16_hi v{vT1}, v{vOo}, s[{sOUT}:{sOUT+3}], 0 offen offset:16 {ofl}")
    if stamp:
        e("    s_waitcnt vmcnt(0)")
        T()
        e(f"    s_memrealtime s[{sT0}:{sT0+1}]")
        e(f"    s_lshl_b32 s{sTmp}, s{sHead}, 2")
        e(f"    s_add_u32 s{sTmp}, s{sTmp}, {SBASE + nwg*(16+256)}")
        e("    s_waitcnt lgkmcnt(0)")
        e(f"    v_mov_b32 v{vBA}, s{sT0}")
        e(f"    s_mov_b64 exec, 1")
        e(f"    buffer_store_dword v{vBA}, off, s[{sWS}:{sWS+3}], s{sTmp}")
        if stamp == 4:
            e(f"    s_mov_b64 exec, -1")
            e(f"    v_mov_b32 v{vSt}, 0")
            e(f"    v_writelane_b32 v{vSt}, s{sT1}, 0")
            for i in range(nst[0]):
                e(f"    v_writelane_b32 v{vSt}, s{sE+2*i}, {i+1}")
            e(f"    v_writelane_b32 v{vSt}, m0, 15")
            e(f"    s_lshl_b32 s{sTmp}, s{sHead}, 8")
            e(f"    s_add_u32 s{sTmp}, s{sTmp}, {SBASE + nwg*16}")
            e(f"    v_lshlrev_b32 v{vT1}, 2, v0")
            e(f"    buffer_store_dword v{vSt}, v{vT1}, s[{sWS}:{sWS+3}], s{sTmp} offen")
    e("L_end:")
    e("    s_endpgm")
    e("L_miss:")
    e("    s_waitcnt vmcnt(0)")
    e(f"    v_readfirstlane_b32 s{sTmp2}, v{vTl}")
    e(f"    s_cmp_lg_u32 s{sTmp2}, {S-1}")
    e(f"    s_cbranch_scc1 L_end")
    loadrecs()
    e("    s_waitcnt vmcnt(0)")
    e("    s_branch L_chk")
    e("L_ctl:")
    e(f"    s_cmp_lg_u32 s{sRem}, 0")
    e(f"    s_cbranch_scc1 L_c1")
    e(f"    v_readfirstlane_b32 s{sTmp}, v{vAt}")
    e(f"    s_mov_b32 s{sStr}, 1")
    e(f"    s_cmp_ge_u32 s{sTmp}, {C2}")
    e(f"    s_cbranch_scc1 L_tail")
    e(f"    s_add_u32 s{sN}, s{sTmp}, {I0*W + c1*a1 - c1 - 1}")
    e(f"    s_mov_b32 s{sRem}, 1")
    if c1:
        e(f"    s_mul_i32 s{sTmp2}, s{sTmp}, {a1}")
        e(f"    s_add_u32 s{sTmp2}, s{sTmp2}, {I0*W - 1}")
        e(f"    s_cmp_lt_u32 s{sTmp}, {c1}")
        e(f"    s_cselect_b32 s{sN}, s{sTmp2}, s{sN}")
        e(f"    s_cselect_b32 s{sRem}, {a1}, 1")
    e("L_c1:")
    e(f"    s_add_u32 s{sN}, s{sN}, s{sStr}")
    e(f"    s_cmp_lg_u32 s{sRem}, 1")
    e(f"    s_cbranch_scc1 L_c2")
    e(f"    v_mov_b32 v{vAt}, 1")
    e(f"    s_mov_b64 exec, 1")
    e(f"    buffer_atomic_add v{vAt}, off, s[{sCT}:{sCT+3}], s{sCnt} {afl}")
    e(f"    s_mov_b64 exec, -1")
    e(f"    s_branch L_ret")
    e("L_tail:")
    e(f"    s_sub_u32 s{sTmp}, s{sTmp}, {C2}")
    e(f"    s_lshl_b32 s{sTmp}, s{sTmp}, 3")
    e(f"    s_lshr_b64 s[{sTW}:{sTW+1}], s[{sTW}:{sTW+1}], s{sTmp}")
    e(f"    s_and_b32 s{sN}, s{sTW}, 7")
    e(f"    s_add_u32 s{sN}, s{sN}, {T0}")
    e(f"    s_bfe_u32 s{sS0}, s{sTW}, 0x10003")
    e(f"    s_mul_i32 s{sS0}, s{sS0}, 0x{DM[4]:x}")
    e(f"    s_bfe_u32 s{sTmp}, s{sTW}, 0x10004")
    e(f"    s_mul_i32 s{sTmp}, s{sTmp}, 0x{DM[5]:x}")
    e(f"    s_xor_b32 s{sS0}, s{sS0}, s{sTmp}")
    e(f"    s_bfe_u32 s{sM}, s{sTW}, 0x30005")
    e(f"    s_mov_b32 s{sLast}, 1")
    e(f"    s_branch L_ret")
    e("L_c2:")
    e(f"    s_cmp_lg_u32 s{sRem}, 2")
    e(f"    s_cbranch_scc1 L_c3")
    e(f"    v_readfirstlane_b32 s{sTmp}, v{vFl}")
    e(f"    s_cmp_eq_u32 s{sTmp}, 0")
    e(f"    s_cbranch_scc1 L_spin")
    e(f"    s_branch L_ret")
    e("L_c3:")
    e(f"    s_cmp_lg_u32 s{sRem}, 3")
    e(f"    s_cbranch_scc1 L_c4")
    e(f"    s_cmp_eq_u32 s{sStr}, 1")
    e(f"    s_cbranch_scc1 L_ret")
    e(f"    s_mov_b64 exec, 1")
    e(f"    buffer_load_dword v{vFl}, off, s[{sDBG}:{sDBG+3}], s{sFl} sc0 sc1")
    e(f"    s_mov_b64 exec, -1")
    e(f"    s_branch L_ret")
    e("L_c4:")
    e(f"    s_cmp_eq_u32 s{sEvt}, 3")
    e(f"    s_cbranch_scc1 L_ret")
    e(f"    s_mov_b32 s{sEvt}, 3")
    if warm:
        e(f"    s_mov_b64 exec, 0")
        e(f"    s_branch L_hop0")
        e("L_hopend:")
        e(f"    s_mov_b64 exec, -1")
    e(f"    s_cmp_lg_u32 s{sSplit}, 0")
    e(f"    s_cbranch_scc1 L_ret")
    e(f"    v_mov_b32 v{vTl}, 1")
    e(f"    s_mov_b64 exec, 1")
    e(f"    buffer_store_dword v{vTl}, off, s[{sDBG}:{sDBG+3}], s{sFl} sc0 sc1")
    e(f"    s_mov_b64 exec, -1")
    e(f"    s_branch L_ret")
    e("L_spin:")
    e(f"    s_mov_b64 exec, 1")
    e(f"    buffer_load_dword v{vFl}, off, s[{sDBG}:{sDBG+3}], s{sFl} sc0 sc1")
    e(f"    s_mov_b64 exec, -1")
    e("    s_waitcnt vmcnt(0)")
    e(f"    v_readfirstlane_b32 s{sTmp}, v{vFl}")
    e(f"    s_cmp_eq_u32 s{sTmp}, 0")
    e(f"    s_cbranch_scc1 L_spin")
    e(f"    s_branch L_ret")
    ncold_warm = len(cold)
    for s in rares:
        e(f"L_rare_{s}:")
        e("    s_nop 1")
        e(f"    v_max_f32_dpp v{vX}, v{vT}, v{vT} row_ror:4 row_mask:0xf bank_mask:0xf")
        e("    s_nop 1")
        e(f"    v_max_f32_dpp v{vX}, v{vX}, v{vX} row_ror:8 row_mask:0xf bank_mask:0xf")
        e("    s_nop 1")
        for r in range(4):
            e(f"    v_readlane_b32 s{sR0+r}, v{vX}, {16*r}")
        e("    s_nop 1")
        e(f"    v_mov_b32 v{vX}, s{sR0}")
        for r in range(1, 4):
            e(f"    v_max_f32 v{vX}, s{sR0+r}, v{vX}")
        e(f"    v_sub_f32 v{vT}, v{vT}, v{vX}")
        e(f"    v_sub_f32 v{vNeg}, v{vNeg}, v{vX}")
        e(f"    v_max_f32 v{vX}, 0, v{vX}")
        e(f"    v_exp_f32 v{vX}, -v{vX}")
        e(f"    s_mov_b32 s{sThr}, 0")
        e(f"    v_mul_f32 v{vL}, v{vL}, v{vX}")
        for r in range(4):
            e(f"    v_mul_f32 v{vAL+r}, v{vAL+r}, v{vX}")
            e(f"    v_mul_f32 v{vAH+r}, v{vAH+r}, v{vX}")
        e(f"    s_branch L_back_{s}")

    e = L.append
    if warm:
        def size(ins):
            t = ins.strip()
            if not t or t.endswith(":") or t.startswith(";"):
                return 0
            op = t.split()[0]
            if op.startswith("buffer_") or op.startswith("s_memrealtime") or "_dpp" in op or op in ("v_readlane_b32", "v_writelane_b32", "v_min3_f32", "v_cvt_pk_bf16_f32"):
                return 8
            import re
            lits = re.findall(r"(?<![\w\[:])(0x[0-9a-f]+|\d+)(?![\w\]:])", t.split(";")[0].split(None, 1)[1] if " " in t.split(";")[0].strip() else "")
            if op.startswith("s_waitcnt") or op.startswith("s_nop") or op.startswith("s_cbranch") or op.startswith("s_branch"):
                return 4
            if any(int(x, 0) > 64 for x in lits):
                return 8
            return 4
        nh = 0
        acc = hop
        out = []
        for i, ins in enumerate(cold[:ncold_warm]):
            if acc >= hop - 4 and not ins.endswith(":") and "L_hop" not in ins and "exec" not in ins and not (out and "exec, 0" in out[-1]):
                out.append(f"L_hop{nh}:")
                out.append(f"    s_cbranch_execz L_hop{nh+1}")
                nh += 1
                acc = 4
            out.append(ins)
            acc += size(ins)
        out.append(f"L_hop{nh}:")
        out.append(f"    s_branch L_hopend")
        cold = out + cold[ncold_warm:]
    L.extend(cold)

    ac = (nvgpr + 3) // 4 * 4
    e('.section .rodata,"a"')
    e(".p2align 6")
    e(f".amdhsa_kernel {NAME}_kernel")
    e(f"  .amdhsa_next_free_vgpr {nvgpr}")
    e(f"  .amdhsa_next_free_sgpr 102")
    e(f"  .amdhsa_accum_offset {ac}")
    e("  .amdhsa_group_segment_fixed_size 0")
    e("  .amdhsa_kernarg_size 48")
    e("  .amdhsa_user_sgpr_count 2")
    e("  .amdhsa_user_sgpr_kernarg_segment_ptr 1")
    e("  .amdhsa_system_sgpr_workgroup_id_x 1")
    e(".end_amdhsa_kernel")
    return "\n".join(L) + "\n"


if __name__ == "__main__":
    out = sys.argv[1]
    kw = {}
    for a in sys.argv[2:]:
        k, v = a.split("=", 1)
        try:
            v = int(v)
        except ValueError:
            v = v.replace("+", " ")
        kw[k] = v
    open(out, "w").write(gen(**kw))
```

```python
import sys
import math
import struct

NAME = "standalone__gqa_softmax__decode"

HEADER = """; Kernarg layout for this problem (48 bytes, ptrs only, base s[0:1]):
"""
FULL = "row_mask:0xf bank_mask:0xf"


def gen(i0=26, kfl="nt", stamp=0, cstride=4352, rot=24, jb="9.10.13.8x15.22.11.12", nb="", evt=4,
        tail="8.7.6.5.3.2.1.0", lds=0, sstride=0, lfirst=0):
    nwg, D, S = 256, 8, 8
    NC = 2048 // D
    I0 = i0
    P = NC - I0 * S
    assert I0 >= evt + 6 and P > 0
    TL = [int(x) for x in str(tail).split(".")]
    assert len(TL) == 8 and all(0 <= x <= 8 for x in TL)
    place = {}
    nbin = 0
    for j in sorted(range(8), key=lambda j: -TL[j]):
        if j in place:
            continue
        if TL[j] == 0:
            place[j] = (0, 0)
            continue
        place[j] = (nbin, 0)
        if TL[j] < 8:
            k = [k for k in range(8) if k not in place and TL[k] == 8 - TL[j]]
            assert k, "tail pieces must pair up to 8"
            place[k[0]] = (nbin, 1)
        nbin += 1
    NT = nbin
    TAILW = sum(((place[j][0] | place[j][1] << 3 | TL[j] << 4) << (8 * j)) for j in range(8))
    C2 = P - NT
    assert C2 >= 0
    DM = [sum(1 << int(t) for t in x.split("x")) for x in str(jb).split(".")]
    assert len(DM) == 7 and all(256 <= m < (1 << 23) and m % 256 == 0 for m in DM)
    basis = []

    def add(v):
        for bb in basis:
            v = min(v, v ^ bb)
        if v:
            basis.append(v)
            basis.sort(reverse=True)
        return bool(v)
    for m in DM:
        assert add(m), "dependent directions"
    NB = []
    pre = [int(x) for x in str(nb).split(".")] if nb != "" else []
    for b in pre + list(range(8, 23)):
        if add(1 << b):
            NB.append(b)
        else:
            assert b not in pre or b in NB
    assert 1 << len(NB) == NC
    runs = []
    for i, b in enumerate(NB):
        if runs and runs[-1][1] + runs[-1][2] == b:
            runs[-1][2] += 1
        else:
            runs.append([i, b, 1])

    def sc(x, ms):
        r = 0
        for i, m in enumerate(ms):
            if (x >> i) & 1:
                r ^= m
        return r
    L = []
    e = L.append

    vOo, vVoff = 1, 2
    vT1, vT2, vT, vP, vSi, vL, vNeg, vC, vX = 3, 4, 5, 6, 7, 8, 9, 10, 11
    vM = 12
    vQ = 16
    vS = 32
    vB = [(36, 40), (232, 236)]
    vBA, vBB = vB[0]
    vAL = 44
    vAH = 48
    vSt, vAt, vTl, vFl = 52, 53, 54, 55
    vAo = [56, 57, 58, 59]
    vVo = [60, 61, 62, 63]
    vRing = 64
    vRec = vRing + 16 * D - 4
    vKa = [220, 221, 222, 223]
    vPk, vTn, vPkR, vPkL = 224, 226, 228, 230
    vMx, vLa, vSo, vSa = 240, 241, 242, 243
    vOwn = 244
    nvgpr = 248

    def Rg(s, c):
        b = vRing + 16 * s + 4 * c
        return f"v[{b}:{b+3}]"

    def r4(b):
        return f"v[{b}:{b+3}]"

    def r2(b):
        return f"v[{b}:{b+1}]"

    sA, sVb, sQ, sWS, sOUT, sDBG = 16, 20, 24, 28, 32, 36
    sScC, sScN = 22, 23
    sHead, sSplit, sRem, sOff, sN, sScB, sEvt, sTmp, sTmp2, sCnt = 40, 41, 42, 43, 44, 45, 46, 47, 48, 49
    sR0 = 50
    sCsel, sRev = 54, 55
    sT0, sT1 = 56, 58
    sCT = 60
    sFl, sRot, sRec, sBase, sN2, sOwn, sM, sS0 = 64, 65, 66, 67, 68, 69, 70, 71
    sE = 72
    sMk = 80
    sTW = 88
    sLast = 90
    sRo = 93
    CBASE = 1 << 20
    RSTR = 8192
    SCB = 32 * RSTR
    SSTR = sstride or P * 512
    assert SSTR >= P * 512 and SCB + 32 * SSTR <= (2 << 20) + (6 << 20)
    if SCB + 32 * SSTR > CBASE:
        SCB = 4 << 20
    WSN = SCB + 32 * SSTR
    SBASE = 2 << 20
    OOB = 0x40000000
    LDS = max(lds, (I0 + P + 2) * 512)

    e(HEADER.rstrip())
    e(f"; @launch grid=({nwg},1,1) block=(64,1,1) lds={LDS}")
    e('.amdgcn_target "amdgcn-amd-amdhsa--gfx950"')
    e(".text")
    e(f".globl {NAME}_kernel")
    e(".p2align 8")
    e(f".type {NAME}_kernel,@function")
    e(f"{NAME}_kernel:")
    e(f"    s_cmp_ge_u32 s2, {nwg}")
    e(f"    s_cbranch_scc1 L_end")
    e("    s_load_dwordx8 s[4:11], s[0:1], 0")
    e("    s_load_dwordx4 s[12:15], s[0:1], 32")
    if stamp:
        e(f"    s_memrealtime s[{sT0}:{sT0+1}]")
    e(f"    s_lshr_b32 s{sHead}, s2, 3")
    e(f"    s_and_b32 s{sSplit}, s2, 7")
    e(f"    v_and_b32 v{vSi}, 3, v0              ; b")
    e(f"    v_lshlrev_b32 v{vT1}, 4, v{vSi}       ; b*16")
    e(f"    v_lshrrev_b32 v{vT2}, 4, v0          ; g")
    e(f"    v_lshl_add_u32 v{vT1}, v{vT2}, 6, v{vT1}")

    def keyoff(dst, base, lo):
        e(f"    v_bfe_u32 v{vX}, v0, {lo}, 1")
        e(f"    v_mul_u32_u24 v{vX}, 0x{DM[0]:x}, v{vX}")
        e(f"    v_xor_b32 v{dst[0]}, v{vX}, v{base}")
        e(f"    v_bfe_u32 v{vX}, v0, {lo+1}, 1")
        e(f"    v_mul_u32_u24 v{vX}, 0x{DM[1]:x}, v{vX}")
        e(f"    v_xor_b32 v{dst[0]}, v{vX}, v{dst[0]}")
        for c in range(1, 4):
            e(f"    v_xor_b32 v{dst[c]}, {sc(c, DM[2:4])}, v{dst[0]}")
    keyoff(vAo, vT1, 2)
    e(f"    s_mov_b32 s{sN}, s{sSplit}")

    def base(e):
        src = sN
        if rot:
            e(f"    s_add_u32 s{sN2}, s{sN}, s{sRot}")
            src = sN2
        for i, (sb, db, ln) in enumerate(runs):
            dst = sBase if i == 0 else sTmp
            e(f"    s_bfe_u32 s{dst}, s{src}, 0x{(ln << 16) | sb:x}")
            e(f"    s_lshl_b32 s{dst}, s{dst}, {db}")
            if i:
                e(f"    s_or_b32 s{sBase}, s{sBase}, s{sTmp}")
    if rot:
        e(f"    s_mul_i32 s{sRot}, s{sHead}, {rot}")
    base(e)
    e(f"    s_lshl_b32 s{sTmp}, s{sHead}, 23")
    e(f"    s_lshl_b32 s{sTmp2}, s{sHead}, 8      ; head*256")
    e(f"    s_mov_b32 s{sA+2}, 0x800000")
    e(f"    s_mov_b32 s{sA+3}, 0x00020000")
    e(f"    s_mov_b32 s{sQ+2}, 0x2000")
    e(f"    s_mov_b32 s{sQ+3}, 0x00020000")
    e("    s_waitcnt lgkmcnt(0)")
    e(f"    s_mov_b32 s{sQ}, s4")
    e(f"    s_mov_b32 s{sQ+1}, s5")
    e(f"    s_add_u32 s{sA}, s6, s{sTmp}")
    e(f"    s_addc_u32 s{sA+1}, s7, 0")
    e(f"    buffer_load_dwordx4 {r4(vBA)}, v{vT1}, s[{sQ}:{sQ+3}], s{sTmp2} offen")

    def refill(e, s, guard):
        n = 8
        so = sBase
        if s or guard:
            so = sOff
            if s:
                e(f"    s_xor_b32 s{sOff}, s{sBase}, {sc(s, DM[4:])}")
                n += 1
            if guard:
                e(f"    s_cmp_lt_u32 {s}, s{sM}")
                e(f"    s_cselect_b32 s{sOff}, s{sOff if s else sBase}, 0x800000")
                n += 2
        for c in range(4):
            e(f"    v_xor_b32 v{vKa[c]}, s{so}, v{vAo[c]}")
        for c in range(4):
            e(f"    buffer_load_dwordx4 {Rg(s,c)}, v{vKa[c]}, s[{sA}:{sA+3}], 0 offen {kfl}".rstrip())
        return n

    for j in range(D):
        refill(e, j, False)
    e(f"    s_add_u32 s{sVb}, s8, s{sTmp}")
    e(f"    s_addc_u32 s{sVb+1}, s9, 0")
    e(f"    v_and_b32 v{vT}, 15, v0")
    e(f"    v_lshlrev_b32 v{vT}, 4, v{vT}")
    keyoff(vVo, vT, 4)
    e(f"    s_add_u32 s{sCT}, s14, {CBASE}")
    e(f"    s_addc_u32 s{sCT+1}, s15, 0")
    e(f"    s_mov_b32 s{sCT+2}, {32*cstride}")
    e(f"    s_mov_b32 s{sCT+3}, 0x00020000")
    e(f"    s_mul_i32 s{sCnt}, s{sHead}, {cstride}")
    e(f"    s_mov_b32 s{sWS}, s14")
    e(f"    s_mov_b32 s{sWS+1}, s15")
    e(f"    s_mov_b32 s{sWS+2}, {max(WSN, SBASE + (1 << 20)) if stamp else WSN}")
    e(f"    s_mov_b32 s{sWS+3}, 0x00020000")
    e(f"    s_add_u32 s{sOUT}, s10, s{sTmp2}")
    e(f"    s_addc_u32 s{sOUT+1}, s11, 0")
    e(f"    s_mov_b32 s{sOUT+2}, 256")
    e(f"    s_mov_b32 s{sOUT+3}, 0x00020000")
    e(f"    s_mov_b32 s{sDBG}, s12")
    e(f"    s_mov_b32 s{sDBG+1}, s13")
    e(f"    s_mov_b32 s{sDBG+2}, 256")
    e(f"    s_mov_b32 s{sDBG+3}, 0x00020000")
    e(f"    s_lshl_b32 s{sFl}, s{sHead}, 2")
    e(f"    s_mul_i32 s{sRec}, s{sHead}, {RSTR}")
    e(f"    s_mul_i32 s{sScB}, s{sHead}, {SSTR}")
    e(f"    s_add_u32 s{sScB}, s{sScB}, {SCB}")
    e(f"    s_lshl_b32 s{sOwn}, s{sSplit}, 10")
    for i in range(1, S):
        e(f"    s_add_u32 s{sRo+i}, s{sOwn}, {i*1024}")
        e(f"    s_and_b32 s{sRo+i}, s{sRo+i}, {S*1024-1}")
        e(f"    s_add_u32 s{sRo+i}, s{sRo+i}, s{sRec}")
    e(f"    s_add_u32 s{sOwn}, s{sOwn}, s{sRec}")
    e(f"    v_lshlrev_b32 v{vVoff}, 4, v0")
    e(f"    v_lshlrev_b32 v{vSo}, 3, v0")
    e(f"    v_mov_b32 v{vLa}, v{vSo}")
    e(f"    v_and_b32 v{vOo}, 7, v0")
    e(f"    v_bfe_u32 v{vX}, v0, 3, 3            ; lane>>3 = g*2 + (j>=8)")
    e(f"    v_lshl_add_u32 v{vOo}, v{vX}, 4, v{vOo}")
    e(f"    v_lshlrev_b32 v{vOo}, 1, v{vOo}")
    e(f"    v_mov_b32 v{vAt}, 0")
    e(f"    v_mov_b32 v{vFl}, 0")
    for r in range(4):
        e(f"    v_mov_b32 v{vAL+r}, 0")
        e(f"    v_mov_b32 v{vAH+r}, 0")
    e(f"    s_cmp_lg_u32 s{sSplit}, 0")
    e(f"    s_cbranch_scc1 L_noinit")
    e(f"    v_lshlrev_b32 v{vTl}, 2, v0")
    e(f"    s_mov_b64 exec, 7")
    e(f"    buffer_store_dword v{vAt}, v{vTl}, s[{sCT}:{sCT+3}], s{sCnt} offen sc0 sc1")
    e(f"    s_mov_b64 exec, -1")
    e(f"    s_add_u32 s{sTmp}, s{sRec}, 4096")
    for i in range(S):
        o = f" offset:{(i%4)*1024}" if i % 4 else ""
        e(f"    buffer_store_dwordx4 {r4(vAL)}, v{vVoff}, s[{sWS}:{sWS+3}], s{sRec if i < 4 else sTmp} offen{o} sc1")
    e("L_noinit:")
    e(f"    s_mov_b32 s{sRem}, {I0-1}")
    e(f"    s_mov_b32 s{sM}, 8")
    e(f"    s_mov_b32 s{sS0}, 0")
    e(f"    s_mov_b32 s{sRev}, 0")
    e(f"    s_mov_b32 s{sLast}, 0")
    e(f"    s_mov_b32 s{sScC}, 0x{OOB:x}")
    e(f"    s_mov_b32 s{sScN}, 0x{OOB:x}")
    e(f"    s_mov_b32 s{sCsel}, s{sCnt}")
    e(f"    s_mov_b32 s{sTW}, 0x{TAILW & 0xffffffff:x}")
    e(f"    s_mov_b32 s{sTW+1}, 0x{TAILW >> 32:x}")
    for q in range(1, 4):
        e(f"    s_mov_b32 s{sMk+2*q}, 0x{0x11111111 << q:x}")
        e(f"    s_mov_b32 s{sMk+2*q+1}, 0x{0x11111111 << q:x}")
    e(f"    s_cmp_eq_u32 s{sSplit}, 0")
    e(f"    s_cselect_b32 s{sEvt}, {I0-1-evt}, 3")
    if stamp >= 2:
        e(f"    s_mov_b32 m0, 0")
        e(f"    v_mov_b32 v{vSt}, 0")
    e(f"    v_bfe_u32 v{vT2}, v0, 2, 2")
    e(f"    v_and_b32 v{vX}, 1, v0")
    e(f"    v_lshlrev_b32 v{vX}, 4, v{vX}")
    e(f"    v_mov_b32 v{vP}, 0xffff")
    e(f"    v_lshlrev_b32 v{vP}, v{vX}, v{vP}")
    e(f"    v_bfe_u32 v{vX}, v0, 1, 2            ; (lane&7)>>1")
    for r in range(4):
        e(f"    v_cmp_eq_u32 vcc, {r}, v{vX}")
        e(f"    s_nop 1")
        e(f"    v_cndmask_b32 v{vM+r}, 0, v{vP}, vcc")
    scale = (128 ** -0.5) * math.log2(math.e)
    cbits = struct.unpack("<I", struct.pack("<f", scale))[0]
    e(f"    v_mov_b32 v{vC}, 0x{cbits:08x}       ; D^-0.5 * log2(e)")
    e(f"    v_mov_b32 v{vL}, 0")
    e(f"    v_mov_b32 v{vMx}, 0xff800000")
    e(f"    s_waitcnt vmcnt({4*D})")
    for c in range(4):
        e(f"    v_cmp_eq_u32 vcc, {c}, v{vT2}")
        e(f"    s_nop 1")
        for r in range(4):
            e(f"    v_cndmask_b32 v{vQ+4*c+r}, 0, v{vBA+r}, vcc")
    e("    s_nop 1")

    def st2a():
        if stamp == 2:
            e(f"    s_memrealtime s[{sT1}:{sT1+1}]")

    def st2b():
        if stamp == 2:
            e("    s_waitcnt lgkmcnt(0)")
            e(f"    v_writelane_b32 v{vSt}, s{sT1}, m0")
            e(f"    s_add_u32 m0, m0, 1")
            e(f"    s_min_u32 m0, m0, 63")

    def atomic(e, soff, off):
        e(f"    v_mov_b32 v{vAt}, 1")
        e(f"    s_mov_b64 exec, 1")
        e(f"    buffer_atomic_add v{vAt}, off, s[{sCT}:{sCT+3}], s{soff}{f' offset:{off}' if off else ''} sc0")
        e(f"    s_mov_b64 exec, -1")

    def kslot(s, w):
        r, q = s >> 2, s & 3
        e(f"    s_waitcnt vmcnt({w})")
        e(f"    v_mfma_f32_16x16x32_bf16 {r4(vS)}, {Rg(s,0)}, {r4(vQ)}, 0")
        for c in range(1, 4):
            e(f"    v_mfma_f32_16x16x32_bf16 {r4(vS)}, {Rg(s,c)}, {r4(vQ+4*c)}, {r4(vS)}")
        refill(e, s, False)
        e(f"    s_nop 1")
        e(f"    v_mov_b32_dpp v{vT1}, v{vS+0} quad_perm:[0,0,0,0] {FULL}")
        e(f"    v_mov_b32_dpp v{vT2}, v{vS+1} quad_perm:[1,1,1,1] {FULL}")
        e(f"    s_nop 0")
        e(f"    v_add_f32_dpp v{vT1}, v{vS+2}, v{vT1} quad_perm:[2,2,2,2] {FULL}")
        e(f"    v_add_f32_dpp v{vT2}, v{vS+3}, v{vT2} quad_perm:[3,3,3,3] {FULL}")
        e(f"    v_add_f32 v{vT if q else vPk+r}, v{vT1}, v{vT2}")
        if q:
            e(f"    v_cndmask_b32 v{vPk+r}, v{vPk+r}, v{vT}, s[{sMk+2*q}:{sMk+2*q+1}]")

    def kend():
        e(f"    ds_write_b64 v{vLa}, {r2(vPk)}")
        e(f"    v_max3_f32 v{vMx}, v{vMx}, v{vPk}, v{vPk+1}")
        e(f"    v_add_u32 v{vLa}, 512, v{vLa}")

    def scstore(e):
        e(f"    v_add_u32 v{vSa}, s{sScC}, v{vSo}")
        e(f"    buffer_store_dwordx2 {r2(vPk)}, v{vSa}, s[{sWS}:{sWS+3}], 0 offen sc1")

    def wavemax(e, src):
        e(f"    v_max_f32_dpp v{vX}, v{src}, v{src} quad_perm:[1,0,3,2] {FULL}")
        for m in ("quad_perm:[2,3,0,1]", "row_ror:4", "row_ror:8"):
            e("    s_nop 1")
            e(f"    v_max_f32_dpp v{vX}, v{vX}, v{vX} {m} {FULL}")
        e("    s_nop 1")
        for r in range(4):
            e(f"    v_readlane_b32 s{sR0+r}, v{vX}, {16*r}")
        e("    s_nop 1")
        e(f"    v_mov_b32 v{vX}, s{sR0}")
        for r in range(1, 4):
            e(f"    v_max_f32 v{vX}, s{sR0+r}, v{vX}")

    rares = []

    def vhead1(tag):
        e(f"    v_fma_f32 v{vT1}, v{vTn}, v{vC}, v{vNeg}")
        e(f"    v_fma_f32 v{vT2}, v{vTn+1}, v{vC}, v{vNeg}")
        if tag:
            e(f"    v_max_f32 v{vP}, v{vT1}, v{vT2}")
            e(f"    v_cmp_lt_f32 vcc, 0, v{vP}")
            e(f"    s_cbranch_vccnz L_rare_{tag}")
            e(f"L_back_{tag}:")
            rares.append(tag)

    def vhead2(mask):
        e(f"    v_exp_f32 v{vT1}, v{vT1}")
        e(f"    v_exp_f32 v{vT2}, v{vT2}")
        if mask:
            e(f"    s_sub_i32 s{sTmp}, s{sM}, 4")
            e(f"    v_cmp_gt_i32 vcc, s{sM}, v{vSi}")
            e(f"    v_cmp_gt_i32 s[{sR0}:{sR0+1}], s{sTmp}, v{vSi}")
            e(f"    s_nop 1")
            e(f"    v_cndmask_b32 v{vT1}, 0, v{vT1}, vcc")
            e(f"    v_cndmask_b32 v{vT2}, 0, v{vT2}, s[{sR0}:{sR0+1}]")
        else:
            e(f"    s_nop 0")
        e(f"    v_cvt_pk_bf16_f32 v{vPk}, v{vT1}, v{vT1}")
        e(f"    v_cvt_pk_bf16_f32 v{vPk+1}, v{vT2}, v{vT2}")
        e(f"    v_add_f32 v{vL}, v{vL}, v{vT1}")
        e(f"    v_add_f32 v{vL}, v{vL}, v{vT2}")
        for r in range(2):
            e(f"    v_mov_b32_dpp v{vPkR+r}, v{vPk+r} row_shr:4 {FULL} bound_ctrl:0")
            e(f"    v_mov_b32_dpp v{vPkL+r}, v{vPk+r} row_shl:4 {FULL} bound_ctrl:0")

    def vslot(s, w, mode):
        r, q = s >> 2, s & 3
        A, B = vB[s & 1]
        qp = f"quad_perm:[{q},{q},{q},{q}] {FULL}"
        for dst, src, m in ((A+0, vPk, 0), (A+1, vPk, 1), (B+2, vPk, 2), (B+3, vPk, 3),
                            (A+2, vPkR, 2), (A+3, vPkR, 3), (B+0, vPkL, 0), (B+1, vPkL, 1)):
            e(f"    v_and_b32_dpp v{dst}, v{src+r}, v{vM+m} {qp}")
        e(f"    s_waitcnt vmcnt({w})")
        e(f"    v_mfma_f32_16x16x32_bf16 {r4(vAL)}, {Rg(s,0)}, {r4(A)}, {r4(vAL)}")
        e(f"    v_mfma_f32_16x16x32_bf16 {r4(vAH)}, {Rg(s,2)}, {r4(A)}, {r4(vAH)}")
        e(f"    v_mfma_f32_16x16x32_bf16 {r4(vAL)}, {Rg(s,1)}, {r4(B)}, {r4(vAL)}")
        e(f"    v_mfma_f32_16x16x32_bf16 {r4(vAH)}, {Rg(s,3)}, {r4(B)}, {r4(vAH)}")
        if mode:
            refill(e, s, mode == 2)

    e(".p2align 6")
    e("L_A:")
    st2a()
    e(f"    s_cmp_le_u32 s{sRem}, s{sEvt}")
    e(f"    s_cbranch_scc1 L_ctlA")
    e("L_retA:")
    e(f"    s_add_u32 s{sN}, s{sN}, 8")
    e(f"    s_sub_u32 s{sRem}, s{sRem}, 1")
    base(e)
    for s in range(D):
        kslot(s, 28)
    kend()
    st2b()
    e(f"    s_cmp_lg_u32 s{sRem}, 0")
    e(f"    s_cbranch_scc1 L_A")
    e("L_B:")
    st2a()
    e(f"    s_waitcnt vmcnt(32)")
    e(f"    v_readfirstlane_b32 s{sTmp}, v{vAt}")
    scstore(e)
    e(f"    s_mov_b32 s{sScC}, s{sScN}")
    atomic(e, sCnt, 0)
    e(f"    s_cmp_ge_u32 s{sTmp}, {P}")
    e(f"    s_cbranch_scc1 L_swV")
    e(f"    s_add_u32 s{sN}, s{sTmp}, {I0*S}")
    e(f"    s_lshl_b32 s{sScN}, s{sTmp}, 9")
    e(f"    s_add_u32 s{sScN}, s{sScN}, s{sScB}")
    e("L_retB:")
    base(e)
    for s in range(D):
        kslot(s, 30)
    kend()
    st2b()
    e(f"    s_cmp_eq_u32 s{sLast}, 0")
    e(f"    s_cbranch_scc1 L_B")
    scstore(e)
    e(f"    ds_read_b64 {r2(vTn)}, v{vSo}")
    e(f"    v_add_u32 v{vLa}, 512, v{vSo}")
    e(f"    s_mov_b32 s{sRem}, {I0-1}")
    e(f"    s_mov_b32 s{sEvt}, {I0-3}")
    e(f"    s_mov_b32 s{sLast}, 0")
    wavemax(e, vMx)
    e(f"    v_mul_f32 v{vNeg}, v{vC}, v{vX}")
    e(f"    v_sub_f32 v{vNeg}, 0, v{vNeg}")
    e("L_C:")
    e(f"    s_cmp_le_u32 s{sRem}, s{sEvt}")
    e(f"    s_cbranch_scc1 L_ctlC")
    e("L_retC:")
    e(f"    s_add_u32 s{sN}, s{sN}, 8")
    e(f"    s_sub_u32 s{sRem}, s{sRem}, 1")
    base(e)
    e(f"    s_waitcnt lgkmcnt(0)")
    st2a()
    vhead1(None)
    e(f"    ds_read_b64 {r2(vTn)}, v{vLa}")
    e(f"    v_add_u32 v{vLa}, 512, v{vLa}")
    vhead2(False)
    for s in range(D):
        vslot(s, 28, 1)
    st2b()
    e(f"    s_cmp_lg_u32 s{sRem}, 0")
    e(f"    s_cbranch_scc1 L_C")
    e("L_D:")
    e(f"    s_waitcnt vmcnt(32) lgkmcnt(0)")
    st2a()
    e(f"    v_readfirstlane_b32 s{sTmp}, v{vAt}")
    vhead1("D")
    e(f"    s_cmp_ge_u32 s{sTmp}, {C2}")
    e(f"    s_cbranch_scc1 L_tail")
    e("L_retD:")
    e(f"    s_add_u32 s{sN}, s{sTmp}, {I0*S}")
    e(f"    s_lshl_b32 s{sTmp}, s{sTmp}, 9")
    e(f"    s_add_u32 s{sTmp}, s{sTmp}, s{sScB}")
    e(f"    buffer_load_dwordx2 {r2(vTn)}, v{vSo}, s[{sWS}:{sWS+3}], s{sTmp} offen sc1")
    atomic(e, sCsel, 8)
    base(e)
    e(f"    s_xor_b32 s{sBase}, s{sBase}, s{sS0}")
    vhead2(False)
    for s in range(D):
        vslot(s, 30, 2)
    st2b()
    e(f"    s_cmp_eq_u32 s{sLast}, 0")
    e(f"    s_cbranch_scc1 L_D")
    nst = [0]

    def T():
        if stamp == 4:
            e(f"    s_memrealtime s[{sE+2*nst[0]}:{sE+2*nst[0]+1}]")
            nst[0] += 1
    e(f"    s_waitcnt vmcnt(32)")
    e(f"    s_cmp_eq_u32 s{sRev}, 0")
    e(f"    s_cbranch_scc1 L_nosw")
    e(f"    v_swap_b32 v{vTn}, v{vTn+1}")
    e("L_nosw:")
    vhead1("F")
    vhead2(True)
    e(f"    v_add_f32_dpp v{vX}, v{vL}, v{vL} quad_perm:[1,0,3,2] {FULL}")
    for m in ("quad_perm:[2,3,0,1]", "row_ror:4", "row_ror:8"):
        e("    s_nop 1")
        e(f"    v_add_f32_dpp v{vX}, v{vX}, v{vX} {m} {FULL}")
    e(f"    v_mov_b32 v{vOwn+2}, v{vNeg}")
    e(f"    v_mov_b32 v{vTl}, 1")
    for r in range(4):
        e(f"    v_readlane_b32 s{sR0+r}, v{vX}, {16*r}")
    e("    s_nop 1")
    e(f"    v_mov_b32 v{vL}, s{sR0}")
    e(f"    v_add_f32 v{vL}, s{sR0+1}, v{vL}")
    e(f"    v_mov_b32 v{vX}, s{sR0+2}")
    e(f"    v_add_f32 v{vX}, s{sR0+3}, v{vX}")
    e(f"    v_add_f32 v{vL}, v{vL}, v{vX}")
    e(f"    v_or_b32 v{vOwn+3}, 1, v{vL}")
    for s in range(D):
        e(f"    s_cmp_eq_u32 s{sM}, {s}")
        e(f"    s_cbranch_scc1 L_done")
        vslot(s, 28 - 4 * s, 0)

    def loadrecs():
        for i in range(1, S):
            b = vRec + 4 * i
            e(f"    buffer_load_dwordx4 v[{b}:{b+3}], v{vVoff}, s[{sWS}:{sWS+3}], s{sRo+i} offen sc1")
    e("L_done:")
    if stamp:
        e(f"    s_memrealtime s[{sT1}:{sT1+1}]")
    if lfirst:
        loadrecs()
        e("    s_nop 1")
    else:
        e("    s_nop 7")
    e(f"    v_add_f32_dpp v{vOwn+0}, v{vAH+0}, v{vAL+0} row_shl:8 row_mask:0xf bank_mask:0x3")
    e(f"    v_add_f32_dpp v{vOwn+1}, v{vAH+1}, v{vAL+1} row_shl:8 row_mask:0xf bank_mask:0x3")
    e(f"    v_add_f32_dpp v{vOwn+0}, v{vAL+2}, v{vAH+2} row_shr:8 row_mask:0xf bank_mask:0xc")
    e(f"    v_add_f32_dpp v{vOwn+1}, v{vAL+3}, v{vAH+3} row_shr:8 row_mask:0xf bank_mask:0xc")
    T()
    e(f"    buffer_store_dwordx4 {r4(vOwn)}, v{vVoff}, s[{sWS}:{sWS+3}], s{sOwn} offen sc1")
    if not lfirst:
        loadrecs()
    e(f"    s_mov_b64 exec, 1")
    e(f"    buffer_atomic_add v{vTl}, off, s[{sCT}:{sCT+3}], s{sCnt} offset:4 sc0")
    e(f"    s_mov_b64 exec, -1")
    nyoung = 1 + lfirst
    if stamp:
        e(f"    s_getreg_b32 s{sTmp2}, hwreg(HW_REG_XCC_ID)")
        e(f"    s_lshl_b32 s{sTmp}, s2, 4")
        e(f"    s_add_u32 s{sTmp}, s{sTmp}, {SBASE}")
        e("    s_waitcnt lgkmcnt(0)")
        e(f"    v_mov_b32 v{vBB}, s{sT0}")
        e(f"    v_mov_b32 v{vBB+1}, s{sT1}")
        e(f"    v_mov_b32 v{vBB+2}, s{sTmp2}")
        e(f"    v_mov_b32 v{vBB+3}, m0")
        e(f"    s_mov_b64 exec, 1")
        e(f"    buffer_store_dwordx4 {r4(vBB)}, off, s[{sWS}:{sWS+3}], s{sTmp}")
        e(f"    s_mov_b64 exec, -1")
        nyoung += 1
        if stamp == 2:
            e(f"    s_lshl_b32 s{sTmp}, s2, 8")
            e(f"    s_add_u32 s{sTmp}, s{sTmp}, {SBASE + nwg*16}")
            e(f"    v_lshlrev_b32 v{vT1}, 2, v0")
            e(f"    buffer_store_dword v{vSt}, v{vT1}, s[{sWS}:{sWS+3}], s{sTmp} offen")
            nyoung += 1
    e(f"    s_waitcnt vmcnt({nyoung})")
    e("L_chk:")
    T()
    R = [vOwn] + [vRec + 4 * i for i in range(1, S)]
    e(f"    v_and_b32 v{vX}, v{R[1]+3}, v{R[2]+3}")
    e(f"    v_and_b32 v{vT}, v{R[3]+3}, v{R[4]+3}")
    e(f"    v_and_b32 v{vX}, v{vX}, v{R[5]+3}")
    e(f"    v_and_b32 v{vT}, v{vT}, v{R[6]+3}")
    e(f"    v_and_b32 v{vX}, v{vX}, v{R[7]+3}")
    e(f"    v_and_b32 v{vX}, v{vX}, v{vT}")
    e(f"    v_and_b32 v{vX}, 1, v{vX}")
    e(f"    v_cmp_eq_u32 vcc, 0, v{vX}")
    if stamp == 4:
        e(f"    s_add_u32 m0, m0, 1")
    e(f"    s_cbranch_vccnz L_miss")
    e(f"    v_min3_f32 v{vT1}, v{R[0]+2}, v{R[1]+2}, v{R[2]+2}")
    e(f"    v_min3_f32 v{vT2}, v{R[3]+2}, v{R[4]+2}, v{R[5]+2}")
    e(f"    v_min3_f32 v{vT1}, v{vT1}, v{R[6]+2}, v{R[7]+2}")
    e(f"    v_min_f32 v{vT1}, v{vT1}, v{vT2}")
    for b in R:
        e(f"    v_sub_f32 v{b+2}, v{vT1}, v{b+2}")
    for b in R:
        e(f"    v_exp_f32 v{b+2}, v{b+2}")
    e(f"    v_mul_f32 v{vT}, v{R[0]+3}, v{R[0]+2}")
    e(f"    v_mul_f32 v{vP}, v{R[1]+3}, v{R[1]+2}")
    for i, b in enumerate(R[2:]):
        e(f"    v_fmac_f32 v{vT if i % 2 == 0 else vP}, v{b+3}, v{b+2}")
    e(f"    v_add_f32 v{vT}, v{vT}, v{vP}")
    e(f"    v_mul_f32 v{vT1}, v{R[0]}, v{R[0]+2}")
    e(f"    v_rcp_f32 v{vT}, v{vT}")
    e(f"    v_mul_f32 v{vT2}, v{R[0]+1}, v{R[0]+2}")
    for b in R[1:]:
        e(f"    v_fmac_f32 v{vT1}, v{b}, v{b+2}")
        e(f"    v_fmac_f32 v{vT2}, v{b+1}, v{b+2}")
    e(f"    v_mul_f32 v{vT1}, v{vT1}, v{vT}")
    e(f"    v_mul_f32 v{vT2}, v{vT2}, v{vT}")
    e(f"    v_cvt_pk_bf16_f32 v{vT1}, v{vT1}, v{vT2}")
    T()
    e(f"    buffer_store_short v{vT1}, v{vOo}, s[{sOUT}:{sOUT+3}], 0 offen")
    e(f"    buffer_store_short_d16_hi v{vT1}, v{vOo}, s[{sOUT}:{sOUT+3}], 0 offen offset:16")
    if stamp:
        e("    s_waitcnt vmcnt(0)")
        T()
        e(f"    s_memrealtime s[{sT0}:{sT0+1}]")
        e(f"    s_lshl_b32 s{sTmp}, s{sHead}, 2")
        e(f"    s_add_u32 s{sTmp}, s{sTmp}, {SBASE + nwg*(16+256)}")
        e("    s_waitcnt lgkmcnt(0)")
        e(f"    v_mov_b32 v{vBA}, s{sT0}")
        e(f"    s_mov_b64 exec, 1")
        e(f"    buffer_store_dword v{vBA}, off, s[{sWS}:{sWS+3}], s{sTmp}")
        if stamp == 4:
            e(f"    s_mov_b64 exec, -1")
            e(f"    v_mov_b32 v{vSt}, 0")
            e(f"    v_writelane_b32 v{vSt}, s{sT1}, 0")
            for i in range(nst[0]):
                e(f"    v_writelane_b32 v{vSt}, s{sE+2*i}, {i+1}")
            e(f"    v_writelane_b32 v{vSt}, m0, 15")
            e(f"    s_lshl_b32 s{sTmp}, s{sHead}, 8")
            e(f"    s_add_u32 s{sTmp}, s{sTmp}, {SBASE + nwg*16}")
            e(f"    v_lshlrev_b32 v{vT1}, 2, v0")
            e(f"    buffer_store_dword v{vSt}, v{vT1}, s[{sWS}:{sWS+3}], s{sTmp} offen")
    e("L_end:")
    e("    s_endpgm")
    e("L_miss:")
    e("    s_waitcnt vmcnt(0)")
    e(f"    v_readfirstlane_b32 s{sTmp2}, v{vTl}")
    e(f"    s_cmp_lg_u32 s{sTmp2}, {S-1}")
    e(f"    s_cbranch_scc1 L_end")
    loadrecs()
    e("    s_waitcnt vmcnt(0)")
    e("    s_branch L_chk")

    def ctl(x, off, want, aoff):
        o = f" offset:{off}" if off else ""
        ld = f"    buffer_load_dword v{vFl}, off, s[{sDBG}:{sDBG+3}], s{sFl}{o} sc0 sc1"
        e(f"L_ctl{x}:")
        e(f"    s_cmp_lg_u32 s{sRem}, 1")
        e(f"    s_cbranch_scc1 L_c2{x}")
        atomic(e, sCnt, aoff)
        e(f"    s_branch L_ret{x}")
        e(f"L_c2{x}:")
        e(f"    s_cmp_lg_u32 s{sRem}, 2")
        e(f"    s_cbranch_scc1 L_c3{x}")
        e(f"    s_waitcnt vmcnt(32)")
        e(f"L_spin{x}:")
        e(f"    v_readfirstlane_b32 s{sTmp}, v{vFl}")
        e(f"    s_cmp_eq_u32 s{sTmp}, {want}")
        e(f"    s_cbranch_scc1 L_ret{x}")
        e(f"    s_mov_b64 exec, 1")
        e(ld)
        e(f"    s_mov_b64 exec, -1")
        e("    s_waitcnt vmcnt(0)")
        e(f"    s_branch L_spin{x}")
        e(f"L_c3{x}:")
        e(f"    s_mov_b64 exec, 1")
        e(f"    s_cmp_lg_u32 s{sRem}, 3")
        e(f"    s_cbranch_scc1 L_c4{x}")
        e(ld)
        e(f"    s_mov_b64 exec, -1")
        e(f"    s_branch L_ret{x}")
        e(f"L_c4{x}:")
        e(f"    s_mov_b32 s{sEvt}, 3")
        e(f"    v_mov_b32 v{vTl}, 1")
        if x == "A":
            e(f"    buffer_store_dword v{vTl}, off, s[{sDBG}:{sDBG+3}], s{sFl} sc0 sc1")
        else:
            e(f"    buffer_atomic_add v{vTl}, off, s[{sDBG}:{sDBG+3}], s{sFl}{o}")
        e(f"    s_mov_b64 exec, -1")
        e(f"    s_branch L_ret{x}")
    ctl("A", 0, 1, 0)
    ctl("C", 128, S, 8)
    e("L_swV:")
    e(f"    s_mov_b32 s{sN}, s{sSplit}")
    e(f"    s_mov_b32 s{sA}, s{sVb}")
    e(f"    s_mov_b32 s{sA+1}, s{sVb+1}")
    for c in range(4):
        e(f"    v_mov_b32 v{vAo[c]}, v{vVo[c]}")
    e(f"    s_mov_b32 s{sLast}, 1")
    e(f"    s_branch L_retB")
    e("L_tail:")
    e(f"    s_sub_u32 s{sTmp}, s{sTmp}, {C2}")
    e(f"    s_lshl_b32 s{sTmp}, s{sTmp}, 3")
    e(f"    s_lshr_b64 s[{sTW}:{sTW+1}], s[{sTW}:{sTW+1}], s{sTmp}")
    e(f"    s_and_b32 s{sTmp}, s{sTW}, 7")
    e(f"    s_add_u32 s{sTmp}, s{sTmp}, {C2}")
    e(f"    s_bfe_u32 s{sRev}, s{sTW}, 0x10003")
    e(f"    s_mul_i32 s{sS0}, s{sRev}, 0x{sc(7, DM[4:]):x}")
    e(f"    s_mul_i32 s{sTmp2}, s{sRev}, 24")
    e(f"    v_xor_b32 v{vSo}, s{sTmp2}, v{vSo}")
    e(f"    s_bfe_u32 s{sM}, s{sTW}, 0x40004")
    e(f"    s_add_u32 s{sCsel}, s{sCnt}, 4")
    e(f"    s_mov_b32 s{sLast}, 1")
    e(f"    s_branch L_retD")
    for s in rares:
        e(f"L_rare_{s}:")
        e("    s_nop 1")
        wavemax(e, vP)
        e(f"    v_sub_f32 v{vT1}, v{vT1}, v{vX}")
        e(f"    v_sub_f32 v{vT2}, v{vT2}, v{vX}")
        e(f"    v_sub_f32 v{vNeg}, v{vNeg}, v{vX}")
        e(f"    v_exp_f32 v{vX}, -v{vX}")
        e("    s_nop 0")
        e(f"    v_mul_f32 v{vL}, v{vL}, v{vX}")
        for r in range(4):
            e(f"    v_mul_f32 v{vAL+r}, v{vAL+r}, v{vX}")
            e(f"    v_mul_f32 v{vAH+r}, v{vAH+r}, v{vX}")
        e(f"    s_branch L_back_{s}")

    ac = (nvgpr + 3) // 4 * 4
    e('.section .rodata,"a"')
    e(".p2align 6")
    e(f".amdhsa_kernel {NAME}_kernel")
    e(f"  .amdhsa_next_free_vgpr {nvgpr}")
    e(f"  .amdhsa_next_free_sgpr 102")
    e(f"  .amdhsa_accum_offset {ac}")
    e("  .amdhsa_group_segment_fixed_size 0")
    e("  .amdhsa_kernarg_size 48")
    e("  .amdhsa_user_sgpr_count 2")
    e("  .amdhsa_user_sgpr_kernarg_segment_ptr 1")
    e("  .amdhsa_system_sgpr_workgroup_id_x 1")
    e(".end_amdhsa_kernel")
    return "\n".join(L) + "\n"


if __name__ == "__main__":
    out = sys.argv[1]
    kw = {}
    for a in sys.argv[2:]:
        k, v = a.split("=", 1)
        try:
            v = int(v)
        except ValueError:
            v = v.replace("+", " ")
        kw[k] = v
    open(out, "w").write(gen(**kw))
```

```python
import sys
import math
import struct

NAME = "standalone__gqa_softmax__decode"

HEADER = """; Kernarg layout for this problem (48 bytes, ptrs only, base s[0:1]):
"""


def lg(x):
    r = int(math.log2(x))
    assert 1 << r == x, x
    return r


def gen(nwg=256, wpw=2, depth=4, i0=24, kfl="nt", vfl="nt", compute=1, stamp=0, tlb=0, empty=0, cws=1, cstride=4352, rot=0, fake=0, afl="sc0", jb="", nb=""):
    S = nwg // 32
    W = S * wpw
    D = depth
    NC = 2048 // D
    assert 2048 % D == 0
    I0 = i0
    assert I0 >= 2 and I0 * W <= NC
    CB = D * 4096
    nsb = lg(D)
    if jb:
        JB = [int(x) for x in str(jb).split(".")]
    else:
        JB = list(range(8, 12 + nsb))
    assert len(JB) == 4 + nsb and len(set(JB)) == len(JB) and all(8 <= b <= 22 for b in JB)
    NB = [b for b in range(8, 23) if b not in JB]
    if nb:
        pre = [int(x) for x in str(nb).split(".")]
        assert all(b in NB for b in pre)
        NB = pre + [b for b in NB if b not in pre]
    assert 1 << len(NB) == NC
    runs = []
    for i, b in enumerate(NB):
        if runs and runs[-1][1] + runs[-1][2] == b:
            runs[-1][2] += 1
        else:
            runs.append([i, b, 1])
    def sc(x, bits):
        return sum(((x >> i) & 1) << b for i, b in enumerate(bits))
    L = []
    e = L.append

    vKoff, vVoff = 1, 2
    vT1, vT2, vT, vP, vPk, vL, vNeg, vC, vX = 3, 4, 5, 6, 7, 8, 9, 10, 11
    vM = 12
    vQ = 16
    vS = 32
    vBA = 36
    vBB = 40
    vAL = 44
    vAH = 48
    vSt = 52
    vAt = 53
    vTl = 54
    vFl = 55
    vKo = [56, 57, 58, 59]
    vVo = [60, 61, 62, 63]
    vRing = 64
    nvgpr = max(vRing + 32 * D, vRing + 4 * max(S, wpw) + 8)
    assert nvgpr <= 256, nvgpr

    def K(s, c):
        b = vRing + 32 * s + 4 * c
        return f"v[{b}:{b+3}]"

    def V(s, c):
        b = vRing + 32 * s + 16 + 4 * c
        return f"v[{b}:{b+3}]"

    def r4(b):
        return f"v[{b}:{b+3}]"

    sK, sV, sQ, sWS, sOUT, sDBG = 16, 20, 24, 28, 32, 36
    sHead, sSplit, sWave, sOff, sN, sThr, sI, sTmp, sTmp2, sCnt = 40, 41, 42, 43, 44, 45, 46, 47, 48, 49
    sR0 = 50
    sEx = 54
    sT0 = 56
    sT1 = 58
    sCT = 60
    sFl = 64
    sRot = 65
    sOwn = 66
    sBase = 67
    sN2 = 68
    CBASE = 1 << 20

    lds_bytes = wpw * 1024
    e(HEADER.rstrip())
    e(f"; @launch grid=({nwg},1,1) block=({wpw*64},1,1) lds={lds_bytes}")
    e('.amdgcn_target "amdgcn-amd-amdhsa--gfx950"')
    e(".text")
    e(f".globl {NAME}_kernel")
    e(".p2align 8")
    e(f".type {NAME}_kernel,@function")
    e(f"{NAME}_kernel:")
    if empty:
        e("    s_endpgm")
    e(f"    s_cmp_ge_u32 s2, {nwg}")
    e(f"    s_cbranch_scc1 L_end")
    e("    s_load_dwordx8 s[4:11], s[0:1], 0")
    e("    s_load_dwordx4 s[12:15], s[0:1], 32")
    if stamp:
        e(f"    s_memrealtime s[{sT0}:{sT0+1}]")
    e(f"    s_lshr_b32 s{sHead}, s2, {lg(S)}")
    e(f"    s_and_b32 s{sSplit}, s2, {S-1}")
    e(f"    v_lshrrev_b32 v{vX}, 6, v0")
    e(f"    v_and_b32 v0, 63, v0                ; lane")
    e(f"    v_readfirstlane_b32 s{sWave}, v{vX}")
    e(f"    v_lshlrev_b32 v{vVoff}, 4, v0")
    e(f"    v_and_b32 v{vT1}, 3, v0              ; b")
    e(f"    v_lshlrev_b32 v{vT1}, 4, v{vT1}       ; b*16")
    e(f"    v_lshrrev_b32 v{vT2}, 4, v0          ; g")
    e(f"    v_lshl_add_u32 v{vT1}, v{vT2}, 6, v{vT1}")
    e(f"    v_bfe_u32 v{vT2}, v0, 2, 2")
    def keyoff(dst, base, lo):
        e(f"    v_bfe_u32 v{vX}, v0, {lo}, 1")
        e(f"    v_lshl_add_u32 v{dst}, v{vX}, {JB[0]}, v{base}")
        e(f"    v_bfe_u32 v{vX}, v0, {lo+1}, 1")
        e(f"    v_lshl_add_u32 v{dst}, v{vX}, {JB[1]}, v{dst}")
    keyoff(vKo[0], vT1, 2)
    e(f"    v_and_b32 v{vT}, 15, v0")
    e(f"    v_lshlrev_b32 v{vT}, 4, v{vT}")
    keyoff(vVo[0], vT, 4)
    for c in range(1, 4):
        e(f"    v_add_u32 v{vKo[c]}, {sc(c, JB[2:4])}, v{vKo[0]}")
        e(f"    v_add_u32 v{vVo[c]}, {sc(c, JB[2:4])}, v{vVo[0]}")
    e(f"    s_lshl_b32 s{sN}, s{sSplit}, {lg(wpw)}")
    e(f"    s_add_u32 s{sN}, s{sN}, s{sWave}")
    def base(guard):
        n = 0
        src = sN
        if rot:
            e(f"    s_add_u32 s{sN2}, s{sN}, s{sRot}")
            src = sN2
            n += 1
        for i, (sb, db, ln) in enumerate(runs):
            dst = sBase if i == 0 else sTmp
            e(f"    s_bfe_u32 s{dst}, s{src}, 0x{(ln << 16) | sb:x}")
            e(f"    s_lshl_b32 s{dst}, s{dst}, {db}")
            n += 2
            if i:
                e(f"    s_or_b32 s{sBase}, s{sBase}, s{sTmp}")
                n += 1
        if guard:
            e(f"    s_cmp_lt_u32 s{sN}, {NC}")
            e(f"    s_cselect_b32 s{sBase}, s{sBase}, 0x800000")
            n += 2
        return n
    if rot:
        e(f"    s_mul_i32 s{sRot}, s{sHead}, {rot}")
    base(False)
    e(f"    s_lshl_b32 s{sTmp}, s{sHead}, 23")
    e(f"    s_lshl_b32 s{sTmp2}, s{sHead}, 8      ; head*256")
    e(f"    s_mov_b32 s{sK+2}, 0x800000")
    e(f"    s_mov_b32 s{sK+3}, 0x00020000")
    e(f"    s_mov_b32 s{sV+2}, 0x800000")
    e(f"    s_mov_b32 s{sV+3}, 0x00020000")
    e(f"    s_mov_b32 s{sQ+2}, 0x2000")
    e(f"    s_mov_b32 s{sQ+3}, 0x00020000")
    e("    s_waitcnt lgkmcnt(0)")
    if stamp == 3:
        e("    s_memrealtime s[72:73]")
    e(f"    s_mov_b32 s{sQ}, s4")
    e(f"    s_mov_b32 s{sQ+1}, s5")
    e(f"    s_add_u32 s{sK}, s6, s{sTmp}")
    e(f"    s_addc_u32 s{sK+1}, s7, 0")
    e(f"    s_add_u32 s{sV}, s8, s{sTmp}")
    e(f"    s_addc_u32 s{sV+1}, s9, 0")
    if cws:
        e(f"    s_add_u32 s{sCT}, s14, {CBASE}")
        e(f"    s_addc_u32 s{sCT+1}, s15, 0")
        e(f"    s_mov_b32 s{sCT+2}, {32*cstride}")
        e(f"    s_mov_b32 s{sCT+3}, 0x00020000")
        e(f"    s_mul_i32 s{sCnt}, s{sHead}, {cstride}")
        e(f"    s_lshl_b32 s{sOwn}, s{sN}, 8")
        e(f"    s_add_u32 s{sOwn}, s{sOwn}, 256")
        e(f"    s_add_u32 s{sOwn}, s{sOwn}, s{sCnt}")
        e(f"    s_cmp_lg_u32 s{sN}, 0")
        e(f"    s_cbranch_scc1 L_noinit")
        e(f"    v_mov_b32 v{vAt}, 0")
        e(f"    s_mov_b64 exec, 3")
        e(f"    v_lshlrev_b32 v{vTl}, 2, v0")
        e(f"    buffer_store_dword v{vAt}, v{vTl}, s[{sCT}:{sCT+3}], s{sCnt} offen sc0 sc1")
        e(f"    s_mov_b64 exec, -1")
        e("L_noinit:")
    e(f"    buffer_load_dwordx4 {r4(vBA)}, v{vT1}, s[{sQ}:{sQ+3}], s{sTmp2} offen")

    def soff(s):
        if s == 0:
            return sBase
        return sOff

    def setoff(s):
        if s:
            e(f"    s_add_u32 s{sOff}, s{sBase}, {sc(s, JB[4:])}")
            return 1
        return 0

    def loadK(s):
        for c in range(4):
            e(f"    buffer_load_dwordx4 {K(s,c)}, v{vKo[c]}, s[{sK}:{sK+3}], s{soff(s)} offen {kfl}".rstrip())

    def loadV(s):
        for c in range(4):
            e(f"    buffer_load_dwordx4 {V(s,c)}, v{vVo[c]}, s[{sV}:{sV+3}], s{soff(s)} offen {vfl}".rstrip())

    for j in range(D):
        setoff(j)
        loadK(j)
        loadV(j)
    if stamp == 3:
        e("    s_memrealtime s[74:75]")
    ntl = 0
    if tlb:
        e(f"    v_lshlrev_b32 v{vTl}, 21, v0")
        e(f"    v_add_u32 v{vTl}, 0x1fffc0, v{vTl}")
        e(f"    s_mov_b64 exec, 15")
        e(f"    buffer_load_dword v{vAt}, v{vTl}, s[{sK}:{sK+3}], 0 offen {kfl}")
        e(f"    buffer_load_dword v{vAt}, v{vTl}, s[{sV}:{sV+3}], 0 offen {vfl}")
        e(f"    s_mov_b64 exec, -1")
        ntl = 2
    e(f"    s_mov_b32 s{sDBG}, s12")
    e(f"    s_mov_b32 s{sDBG+1}, s13")
    e(f"    s_mov_b32 s{sDBG+2}, 256")
    e(f"    s_mov_b32 s{sDBG+3}, 0x00020000")
    if cws:
        e(f"    s_lshl_b32 s{sFl}, s{sHead}, 2")
        sC = sCT
    else:
        e(f"    s_lshl_b32 s{sCnt}, s{sHead}, 3")
        sC = sDBG
    e(f"    s_mov_b32 s{sI}, 0")
    if stamp >= 2:
        e(f"    s_mov_b32 m0, 0")
        e(f"    v_mov_b32 v{vSt}, 0")
    e(f"    s_mov_b32 s{sThr}, 0xff800000")
    e(f"    v_and_b32 v{vX}, 1, v0")
    e(f"    v_lshlrev_b32 v{vX}, 4, v{vX}")
    e(f"    v_mov_b32 v{vP}, 0xffff")
    e(f"    v_lshlrev_b32 v{vP}, v{vX}, v{vP}")
    e(f"    v_bfe_u32 v{vX}, v0, 1, 2            ; (lane&7)>>1")
    for r in range(4):
        e(f"    v_cmp_eq_u32 vcc, {r}, v{vX}")
        e(f"    s_nop 1")
        e(f"    v_cndmask_b32 v{vM+r}, 0, v{vP}, vcc")
    scale = (128 ** -0.5) * math.log2(math.e)
    cbits = struct.unpack("<I", struct.pack("<f", scale))[0]
    e(f"    v_mov_b32 v{vC}, 0x{cbits:08x}       ; D^-0.5 * log2(e)")
    e(f"    v_mov_b32 v{vL}, 0")
    e(f"    v_mov_b32 v{vNeg}, 0")
    for r in range(4):
        e(f"    v_mov_b32 v{vAL+r}, 0")
        e(f"    v_mov_b32 v{vAH+r}, 0")
    if stamp == 3:
        e("    s_memrealtime s[76:77]")
    e(f"    s_waitcnt vmcnt({min(63, 8*D+ntl)})")
    if stamp == 3:
        e("    s_memrealtime s[78:79]")
        e(f"    s_waitcnt vmcnt({8*D-4})")
        e("    s_memrealtime s[80:81]")
        e(f"    s_waitcnt vmcnt({8*D-8})")
        e("    s_memrealtime s[82:83]")
        e("    s_waitcnt lgkmcnt(0)")
        for i in range(6):
            e(f"    v_writelane_b32 v{vSt}, s{72+2*i}, {i}")
        e("    s_mov_b32 m0, 6")
    if cws:
        e(f"    s_cmp_lg_u32 s{sN}, 0")
        e(f"    s_cbranch_scc1 L_noflag")
        e(f"    v_mov_b32 v{vAt}, 1")
        e(f"    s_mov_b64 exec, 1")
        e(f"    buffer_store_dword v{vAt}, off, s[{sDBG}:{sDBG+3}], s{sFl} sc0 sc1")
        e(f"    s_mov_b64 exec, -1")
        e("L_noflag:")
    for c in range(4):
        e(f"    v_cmp_eq_u32 vcc, {c}, v{vT2}")
        e(f"    s_nop 1")
        for r in range(4):
            e(f"    v_cndmask_b32 v{vQ+4*c+r}, 0, v{vBA+r}, vcc")
    e("    s_nop 1")

    rares = []
    fully_static = (I0 * W == NC)
    nstat = I0 if fully_static else I0 - 2
    assert not (cws and (fully_static or nstat < 1))

    def body(tag, dyn):
        for s in range(D):
            wn = 8 * D - 4 + (1 if (dyn and s > 0) else 0)
            wn2 = 8 * D - 4 + (1 if dyn else 0)
            assert wn2 <= 63
            e(f"    s_waitcnt vmcnt({wn})")
            nfill = 0
            if compute:
                e(f"    v_mfma_f32_16x16x32_bf16 {r4(vS)}, {K(s,0)}, {r4(vQ)}, 0")
                for c in range(1, 4):
                    e(f"    v_mfma_f32_16x16x32_bf16 {r4(vS)}, {K(s,c)}, {r4(vQ+4*c)}, {r4(vS)}")
            if s == 0:
                if dyn == 2:
                    if fake:
                        e(f"    v_readfirstlane_b32 s{sTmp}, v{vAt}")
                        e(f"    v_mov_b32 v{vAt}, 1")
                        e(f"    s_add_u32 s{sN}, s{sN}, {W}")
                    else:
                        e(f"    v_readfirstlane_b32 s{sN}, v{vAt}")
                        e(f"    v_mov_b32 v{vAt}, 1")
                        e(f"    s_add_u32 s{sN}, s{sN}, {I0*W}")
                    e(f"    s_min_u32 s{sN}, s{sN}, {NC}")
                    nfill += 4
                else:
                    e(f"    s_add_u32 s{sN}, s{sN}, {W}")
                    nfill += 1
                    if dyn:
                        if cws:
                            e(f"    v_readfirstlane_b32 s{sTmp}, v{vFl}")
                            e(f"    s_cmp_eq_u32 s{sTmp}, 0")
                            e(f"    s_cbranch_scc1 L_spin")
                            e("L_spun:")
                        e(f"    v_mov_b32 v{vAt}, 1")
                        nfill += 1
                    elif cws:
                        e(f"    s_cmp_lg_u32 s{sI}, {nstat-1}")
                        e(f"    s_cbranch_scc1 L_nofl")
                        e(f"    s_mov_b64 exec, 1")
                        e(f"    buffer_load_dword v{vFl}, off, s[{sDBG}:{sDBG+3}], s{sFl} sc0 sc1")
                        e(f"    s_mov_b64 exec, -1")
                        e("L_nofl:")
                if dyn:
                    e(f"    s_mov_b64 exec, 1")
                    if fake == 2:
                        e(f"    buffer_atomic_add v{vAt}, off, s[{sC}:{sC+3}], s{sCnt}")
                    elif fake == 3:
                        e(f"    buffer_load_dword v{vAt}, off, s[{sC}:{sC+3}], s{sCnt} sc1")
                    elif fake == 4:
                        e(f"    buffer_atomic_add v{vAt}, off, s[{sC}:{sC+3}], s{sOwn} {afl}")
                    elif fake == 5:
                        e(f"    buffer_store_dword v{vAt}, off, s[{sC}:{sC+3}], s{sOwn} sc1")
                    else:
                        e(f"    buffer_atomic_add v{vAt}, off, s[{sC}:{sC+3}], s{sCnt} {afl}")
                    e(f"    s_mov_b64 exec, -1")
                    nfill += 3
                nfill += base(dyn == 2 or fully_static)
            else:
                nfill += setoff(s)
            loadK(s)
            nfill += 4
            if compute:
                e(f"    v_mov_b32 v{vT1}, v{vNeg}")
                nfill += 1
                pad = max(8 - nfill, 2)
                e(f"    s_nop {pad-1}")
                e(f"    v_fmac_f32_dpp v{vT1}, v{vS+0}, v{vC} quad_perm:[0,0,0,0] row_mask:0xf bank_mask:0xf")
                e(f"    v_mul_f32_dpp v{vT2}, v{vS+1}, v{vC} quad_perm:[1,1,1,1] row_mask:0xf bank_mask:0xf")
                e(f"    s_nop 0")
                e(f"    v_fmac_f32_dpp v{vT1}, v{vS+2}, v{vC} quad_perm:[2,2,2,2] row_mask:0xf bank_mask:0xf")
                e(f"    v_fmac_f32_dpp v{vT2}, v{vS+3}, v{vC} quad_perm:[3,3,3,3] row_mask:0xf bank_mask:0xf")
                e(f"    v_add_f32 v{vT}, v{vT1}, v{vT2}")
                e(f"    v_cmp_lt_f32 vcc, s{sThr}, v{vT}")
                e(f"    s_cbranch_vccnz L_rare_{tag}{s}")
                e(f"L_back_{tag}{s}:")
                rares.append(f"{tag}{s}")
                e(f"    v_exp_f32 v{vP}, v{vT}")
                e(f"    s_nop 0")
                e(f"    v_cvt_pk_bf16_f32 v{vPk}, v{vP}, v{vP}")
                e(f"    v_add_f32 v{vL}, v{vL}, v{vP}")
                e(f"    v_and_b32 v{vBA+0}, v{vPk}, v{vM+0}")
                e(f"    v_and_b32 v{vBA+1}, v{vPk}, v{vM+1}")
                e(f"    v_and_b32 v{vBB+2}, v{vPk}, v{vM+2}")
                e(f"    v_and_b32 v{vBB+3}, v{vPk}, v{vM+3}")
                e(f"    v_and_b32_dpp v{vBA+2}, v{vPk}, v{vM+2} row_shr:4 row_mask:0xf bank_mask:0xf bound_ctrl:0")
                e(f"    v_and_b32_dpp v{vBA+3}, v{vPk}, v{vM+3} row_shr:4 row_mask:0xf bank_mask:0xf bound_ctrl:0")
                e(f"    v_and_b32_dpp v{vBB+0}, v{vPk}, v{vM+0} row_shl:4 row_mask:0xf bank_mask:0xf bound_ctrl:0")
                e(f"    v_and_b32_dpp v{vBB+1}, v{vPk}, v{vM+1} row_shl:4 row_mask:0xf bank_mask:0xf bound_ctrl:0")
            e(f"    s_waitcnt vmcnt({wn2})")
            if compute:
                e(f"    v_mfma_f32_16x16x32_bf16 {r4(vAL)}, {V(s,0)}, {r4(vBA)}, {r4(vAL)}")
                e(f"    v_mfma_f32_16x16x32_bf16 {r4(vAH)}, {V(s,2)}, {r4(vBA)}, {r4(vAH)}")
                e(f"    v_mfma_f32_16x16x32_bf16 {r4(vAL)}, {V(s,1)}, {r4(vBB)}, {r4(vAL)}")
                e(f"    v_mfma_f32_16x16x32_bf16 {r4(vAH)}, {V(s,3)}, {r4(vBB)}, {r4(vAH)}")
            loadV(s)

    def st_top():
        if stamp >= 2:
            e(f"    s_memrealtime s[{sT1}:{sT1+1}]")

    def st_bot():
        if stamp >= 2:
            e("    s_waitcnt lgkmcnt(0)")
            e(f"    v_writelane_b32 v{vSt}, s{sT1}, m0")
            e(f"    s_add_u32 m0, m0, 1")
            e(f"    s_min_u32 m0, m0, 63")

    if nstat > 0:
        e(".p2align 6")
        e("L_sloop:")
        st_top()
        body("s", 0)
        st_bot()
        e(f"    s_add_u32 s{sI}, s{sI}, 1")
        e(f"    s_cmp_lt_u32 s{sI}, {nstat}")
        e(f"    s_cbranch_scc1 L_sloop")
    if not fully_static:
        st_top()
        body("t", 1)
        st_bot()
        e(".p2align 6")
        e("L_dloop:")
        st_top()
        body("d", 2)
        st_bot()
        e(f"    s_cmp_lt_u32 s{sN}, {NC}")
        e(f"    s_cbranch_scc1 L_dloop")
    e("L_done:")
    e("    s_nop 7")
    e("    s_nop 1")
    e(f"    v_add_f32_dpp v{vX}, v{vL}, v{vL} row_ror:4 row_mask:0xf bank_mask:0xf")
    for r in range(4):
        e(f"    v_add_f32_dpp v{vAL+r}, v{vAH+r}, v{vAL+r} row_shl:8 row_mask:0xf bank_mask:0xf bound_ctrl:0")
    e(f"    v_add_f32_dpp v{vX}, v{vX}, v{vX} row_ror:8 row_mask:0xf bank_mask:0xf")
    e("    s_nop 1")
    for r in range(4):
        e(f"    v_readlane_b32 s{sR0+r}, v{vX}, {16*r}")
    e("    s_nop 1")
    e(f"    v_mov_b32 v{vL}, s{sR0}")
    for r in range(1, 4):
        e(f"    v_add_f32 v{vL}, s{sR0+r}, v{vL}")
    e(f"    s_mov_b32 s{sWS}, s14")
    e(f"    s_mov_b32 s{sWS+1}, s15")
    e(f"    s_mov_b32 s{sWS+2}, {nwg*1024 + (nwg*wpw*(16+256) + 4096 if stamp else 0)}")
    e(f"    s_mov_b32 s{sWS+3}, 0x00020000")
    e(f"    s_mov_b32 s{sOUT}, s10")
    e(f"    s_mov_b32 s{sOUT+1}, s11")
    e(f"    s_mov_b32 s{sOUT+2}, 0x2000")
    e(f"    s_mov_b32 s{sOUT+3}, 0x00020000")
    if stamp:
        e(f"    s_memrealtime s[{sT1}:{sT1+1}]")
        e(f"    s_getreg_b32 s{sTmp2}, hwreg(HW_REG_XCC_ID)")
        e(f"    s_getreg_b32 s{sR0}, hwreg(HW_REG_HW_ID)")
        e(f"    s_lshl_b32 s{sTmp}, s2, {lg(wpw)}")
        e(f"    s_add_u32 s{sTmp}, s{sTmp}, s{sWave}")
        e(f"    s_lshl_b32 s{sTmp}, s{sTmp}, 4")
        e(f"    s_add_u32 s{sTmp}, s{sTmp}, {nwg*1024}")
        e("    s_waitcnt lgkmcnt(0)")
        e(f"    v_mov_b32 v{vBA}, s{sT0}")
        e(f"    v_mov_b32 v{vBA+1}, s{sT1}")
        e(f"    v_mov_b32 v{vBA+2}, s{sTmp2}")
        if stamp >= 2:
            e(f"    v_mov_b32 v{vBA+3}, m0")
        else:
            e(f"    v_mov_b32 v{vBA+3}, s{sR0}")
        e(f"    s_mov_b64 exec, 1")
        e(f"    buffer_store_dwordx4 {r4(vBA)}, off, s[{sWS}:{sWS+3}], s{sTmp}")
        e(f"    s_mov_b64 exec, -1")
        if stamp >= 2:
            e(f"    s_lshl_b32 s{sTmp}, s2, {lg(wpw)}")
            e(f"    s_add_u32 s{sTmp}, s{sTmp}, s{sWave}")
            e(f"    s_lshl_b32 s{sTmp}, s{sTmp}, 8")
            e(f"    s_add_u32 s{sTmp}, s{sTmp}, {nwg*1024 + nwg*wpw*16}")
            e(f"    v_lshlrev_b32 v{vT1}, 2, v0")
            e(f"    buffer_store_dword v{vSt}, v{vT1}, s[{sWS}:{sWS+3}], s{sTmp} offen")
    e(f"    v_lshrrev_b32 v{vT1}, 4, v0")
    e(f"    v_lshlrev_b32 v{vT1}, 7, v{vT1}       ; g*128 bytes")
    e(f"    v_and_b32 v{vT2}, 15, v0")
    e(f"    v_lshl_add_u32 v{vT1}, v{vT2}, 2, v{vT1}")
    e(f"    s_lshl_b32 s{sTmp}, s{sWave}, 10")
    e(f"    v_add_u32 v{vT1}, s{sTmp}, v{vT1}")
    e(f"    v_mov_b32 v{vT}, s{sTmp}")
    e(f"    v_cmp_gt_u32 vcc, 8, v{vT2}")
    e(f"    s_and_saveexec_b64 s[{sEx}:{sEx+1}], vcc")
    for r in range(4):
        e(f"    ds_write_b32 v{vT1}, v{vAL+r} offset:{32*r}")
    e(f"    ds_write_b32 v{vT}, v{vNeg} offset:512")
    e(f"    ds_write_b32 v{vT}, v{vL} offset:516")
    e(f"    s_mov_b64 exec, s[{sEx}:{sEx+1}]")
    e("    s_waitcnt vmcnt(0) lgkmcnt(0)")
    e("    s_barrier")
    e(f"    s_cmp_lg_u32 s{sWave}, 0")
    e(f"    s_cbranch_scc1 L_end")
    e(f"    v_lshlrev_b32 v{vT1}, 3, v0")
    e(f"    v_mov_b32 v{vT2}, 0")
    for w in range(wpw):
        b = vRing + 4 * w
        e(f"    ds_read_b64 v[{b}:{b+1}], v{vT1} offset:{1024*w}")
        e(f"    ds_read_b64 v[{b+2}:{b+3}], v{vT2} offset:{1024*w+512}")
    e("    s_waitcnt lgkmcnt(0)")

    def combine(n, base, dst):
        e(f"    v_mov_b32 v{dst+2}, v{base+2}")
        for i in range(1, n):
            e(f"    v_min_f32 v{dst+2}, v{dst+2}, v{base+4*i+2}")
        for i in range(n):
            e(f"    v_sub_f32 v{base+4*i+2}, v{dst+2}, v{base+4*i+2}")
        for i in range(n):
            e(f"    v_exp_f32 v{base+4*i+2}, v{base+4*i+2}")
        e("    s_nop 0")
        for i in range(n):
            b = base + 4 * i
            op = "v_mul_f32" if i == 0 else "v_fmac_f32"
            e(f"    {op} v{dst}, v{b}, v{b+2}")
            e(f"    {op} v{dst+1}, v{b+1}, v{b+2}")
            e(f"    {op} v{dst+3}, v{b+3}, v{b+2}")

    combine(wpw, vRing, vBA)
    e(f"    s_lshl_b32 s{sTmp}, s{sHead}, {lg(S)}")
    e(f"    s_add_u32 s{sTmp2}, s{sTmp}, s{sSplit}")
    e(f"    s_lshl_b32 s{sTmp2}, s{sTmp2}, 10")
    e(f"    s_lshl_b32 s{sTmp}, s{sTmp}, 10")
    e(f"    buffer_store_dwordx4 {r4(vBA)}, v{vVoff}, s[{sWS}:{sWS+3}], s{sTmp2} offen sc1")
    e(f"    v_mov_b32 v{vX}, 1")
    e("    s_waitcnt vmcnt(0)")
    e(f"    s_mov_b64 exec, 1")
    e(f"    buffer_atomic_add v{vX}, off, s[{sC}:{sC+3}], s{sCnt} offset:4 {afl}")
    e("    s_waitcnt vmcnt(0)")
    e(f"    v_readfirstlane_b32 s{sTmp2}, v{vX}")
    e(f"    s_mov_b64 exec, -1")
    e(f"    s_cmp_lg_u32 s{sTmp2}, {S-1}")
    e(f"    s_cbranch_scc1 L_end")
    for i in range(S):
        b = vRing + 4 * i
        if i and i % 4 == 0:
            e(f"    s_add_u32 s{sTmp}, s{sTmp}, 4096")
        o = f" offset:{(i%4)*1024}" if i % 4 else ""
        e(f"    buffer_load_dwordx4 v[{b}:{b+3}], v{vVoff}, s[{sWS}:{sWS+3}], s{sTmp} offen{o} sc1")
    e(f"    s_lshl_b32 s{sTmp2}, s{sHead}, 8")
    e(f"    v_lshrrev_b32 v{vX}, 2, v{vVoff}      ; lane*4")
    e("    s_waitcnt vmcnt(0)")
    combine(S, vRing, vBA)
    e(f"    v_rcp_f32 v{vBA+3}, v{vBA+3}")
    e("    s_nop 0")
    e(f"    v_mul_f32 v{vBA}, v{vBA}, v{vBA+3}")
    e(f"    v_mul_f32 v{vBA+1}, v{vBA+1}, v{vBA+3}")
    e(f"    v_cvt_pk_bf16_f32 v{vBA}, v{vBA}, v{vBA+1}")
    e(f"    buffer_store_dword v{vBA}, v{vX}, s[{sOUT}:{sOUT+3}], s{sTmp2} offen")
    if stamp:
        e("    s_waitcnt vmcnt(0)")
        e(f"    s_memrealtime s[{sT1}:{sT1+1}]")
        e(f"    s_lshl_b32 s{sTmp}, s{sHead}, 2")
        e(f"    s_add_u32 s{sTmp}, s{sTmp}, {nwg*1024 + nwg*wpw*(16+256)}")
        e("    s_waitcnt lgkmcnt(0)")
        e(f"    v_mov_b32 v{vBA}, s{sT1}")
        e(f"    s_mov_b64 exec, 1")
        e(f"    buffer_store_dword v{vBA}, off, s[{sWS}:{sWS+3}], s{sTmp}")
    e("L_end:")
    e("    s_endpgm")
    if cws:
        e("L_spin:")
        e(f"    s_mov_b64 exec, 1")
        e(f"    buffer_load_dword v{vFl}, off, s[{sDBG}:{sDBG+3}], s{sFl} sc0 sc1")
        e(f"    s_mov_b64 exec, -1")
        e("    s_waitcnt vmcnt(0)")
        e(f"    v_readfirstlane_b32 s{sTmp}, v{vFl}")
        e(f"    s_cmp_eq_u32 s{sTmp}, 0")
        e(f"    s_cbranch_scc1 L_spin")
        e(f"    s_branch L_spun")
    for tag in rares:
        e(f"L_rare_{tag}:")
        e("    s_nop 1")
        e(f"    v_max_f32_dpp v{vX}, v{vT}, v{vT} row_ror:4 row_mask:0xf bank_mask:0xf")
        e("    s_nop 1")
        e(f"    v_max_f32_dpp v{vX}, v{vX}, v{vX} row_ror:8 row_mask:0xf bank_mask:0xf")
        e("    s_nop 1")
        for r in range(4):
            e(f"    v_readlane_b32 s{sR0+r}, v{vX}, {16*r}")
        e("    s_nop 1")
        e(f"    v_mov_b32 v{vX}, s{sR0}")
        for r in range(1, 4):
            e(f"    v_max_f32 v{vX}, s{sR0+r}, v{vX}")
        e(f"    v_sub_f32 v{vT}, v{vT}, v{vX}")
        e(f"    v_sub_f32 v{vNeg}, v{vNeg}, v{vX}")
        e(f"    v_max_f32 v{vX}, 0, v{vX}")
        e(f"    v_exp_f32 v{vX}, -v{vX}")
        e(f"    s_mov_b32 s{sThr}, 0")
        e(f"    v_mul_f32 v{vL}, v{vL}, v{vX}")
        for r in range(4):
            e(f"    v_mul_f32 v{vAL+r}, v{vAL+r}, v{vX}")
            e(f"    v_mul_f32 v{vAH+r}, v{vAH+r}, v{vX}")
        e(f"    s_branch L_back_{tag}")

    ac = (nvgpr + 3) // 4 * 4
    e('.section .rodata,"a"')
    e(".p2align 6")
    e(f".amdhsa_kernel {NAME}_kernel")
    e(f"  .amdhsa_next_free_vgpr {nvgpr}")
    e(f"  .amdhsa_next_free_sgpr 96")
    e(f"  .amdhsa_accum_offset {ac}")
    e("  .amdhsa_group_segment_fixed_size 0")
    e("  .amdhsa_kernarg_size 48")
    e("  .amdhsa_user_sgpr_count 2")
    e("  .amdhsa_user_sgpr_kernarg_segment_ptr 1")
    e("  .amdhsa_system_sgpr_workgroup_id_x 1")
    e(".end_amdhsa_kernel")
    return "\n".join(L) + "\n"


if __name__ == "__main__":
    out = sys.argv[1]
    kw = {}
    for a in sys.argv[2:]:
        k, v = a.split("=", 1)
        try:
            v = int(v)
        except ValueError:
            v = v.replace("+", " ")
        kw[k] = v
    open(out, "w").write(gen(**kw))
```
